```python
import torch

def _softmax(x, axis=-1):
    return torch.softmax(x, dim=axis)
def _gelu(x):
    return torch.nn.functional.gelu(x, approximate="tanh")
def _silu(x):
    return torch.nn.functional.silu(x)
def _sigmoid(x):
    return torch.sigmoid(x)
def _layernorm(x, axis=-1, eps=1e-5):
    m = x.mean(dim=axis, keepdim=True)
    v = x.var(dim=axis, keepdim=True, unbiased=False)
    return (x - m) / torch.sqrt(v + eps)
def _scatter_add(tgt, idx, src, axis=0):
    return tgt.clone().index_add_(axis, idx, src)
def _segment_sum(src, seg, n):
    out = torch.zeros((n,) + src.shape[1:], dtype=src.dtype)
    return out.index_add_(0, seg, src)
def _pad(x, pw):
    flat = tuple(v for pair in reversed(pw) for v in pair)
    return torch.nn.functional.pad(x, flat)

kernel_name = 'interleave_layers__ssm_conv_h3__glu_gated_reglu__prompt'

def setup_inputs():

    _w = (lambda a: (lambda t: t.to(torch.bfloat16) if t.is_floating_point() else t)(torch.as_tensor(a)))
    def _A_setup():
        B, S, D = 1, 2048, 576
        ks = 4
        return {
            "q": _w((lambda *s: torch.randn(*s, dtype=torch.bfloat16) * 0.05)(B, S, D)),
            "k": _w((lambda *s: torch.randn(*s, dtype=torch.bfloat16) * 0.2)(B, S, D)),
            "v": _w((lambda *s: torch.randn(*s, dtype=torch.bfloat16) * 0.2)(B, S, D)),
            "shift_k": _w((lambda *s: torch.randn(*s, dtype=torch.bfloat16) * 0.2)(D, ks) * 0.5),
            "ssm_k": _w((lambda *s: torch.randn(*s, dtype=torch.bfloat16) * 0.4)(D, S) * (1.0 / S ** 0.5)),
            "ssm_D": _w((lambda *s: torch.randn(*s, dtype=torch.bfloat16) * 0.2)(D)),
        }
    _A_in = _A_setup()

    def _B_setup():
        B, S, D, F = 1, 2048, 576, 4608
        return {
            "x": _w((lambda *s: torch.randn(*s, dtype=torch.bfloat16) * 0.05)(B, S, D)),
            "W_gate": _w((lambda *s: torch.randn(*s, dtype=torch.bfloat16) * 0.2)(D, F) * (2.0 / D) ** 0.5),
            "W_up": _w((lambda *s: torch.randn(*s, dtype=torch.bfloat16) * 0.2)(D, F) * (2.0 / D) ** 0.5),
            "W_down": _w((lambda *s: torch.randn(*s, dtype=torch.bfloat16) * 0.2)(F, D) * (1.0 / F) ** 0.5),
        }
    _B_in = _B_setup()

    return {
        "A_q": _A_in["q"],
        "A_k": _A_in["k"],
        "A_v": _A_in["v"],
        "A_shift_k": _A_in["shift_k"],
        "A_ssm_k": _A_in["ssm_k"],
        "A_ssm_D": _A_in["ssm_D"],
        "B_x": _B_in["x"],
        "B_W_gate": _B_in["W_gate"],
        "B_W_up": _B_in["W_up"],
        "B_W_down": _B_in["W_down"],
    }

def reference(A_q, A_k, A_v, A_shift_k, A_ssm_k, A_ssm_D, B_x, B_W_gate, B_W_up, B_W_down):
    def _A_ref(q, k, v, shift_k, ssm_k, ssm_D):
        B, S, D = q.shape
        ks = shift_k.shape[-1]
        k_pad = _pad(k, ((0, 0), (ks - 1, 0), (0, 0)))
        k_shift = torch.zeros_like(k)
        for t in range(ks):
            k_shift = k_shift + k_pad[:, t:t + S, :] * shift_k[:, ks - 1 - t][None, None, :]
        kv = k_shift * v
        L = 2 * S
        kv_pad = _pad(kv, ((0, 0), (0, S), (0, 0)))
        kf_pad = _pad(ssm_k, ((0, 0), (0, S)))
        kv_f = (lambda x, axes=(-2,-1): torch.fft.rfft2(x.float(), dim=axes))(kv_pad[:, None, :, :], axes=(1, 2))
        kf_f = (lambda x, axes=(-2,-1): torch.fft.rfft2(x.float(), dim=axes))(kf_pad[:, None, :], axes=(1, 2))
        kf_f = (lambda x, *d: x.permute(*d))(kf_f, 1, 2, 0)
        y_f = kv_f * kf_f[None, :, :, :]
        y = (lambda x, s, axes=(-2,-1): torch.fft.irfft2(x, s=s, dim=axes).to(torch.bfloat16))(y_f, (1, L), axes=(1, 2))[:, 0, :S, :]
        y = y + kv * ssm_D[None, None, :]
        return q * y

    def _B_ref(x, W_gate, W_up, W_down):
        gate = torch.einsum("bsd,df->bsf", x, W_gate)
        up = torch.einsum("bsd,df->bsf", x, W_up)
        gate = gate * (lambda x, dt: x.to(dt))(gate > 0, gate.dtype)
        h = gate * up
        return torch.einsum("bsf,fd->bsd", h, W_down)

    x = A_q
    x = x + _A_ref(_layernorm(x, axis=-1), A_k, A_v, A_shift_k, A_ssm_k, A_ssm_D)
    x = x + _B_ref(_layernorm(x, axis=-1), B_W_gate, B_W_up, B_W_down)
    x = x + _A_ref(_layernorm(x, axis=-1), A_k, A_v, A_shift_k, A_ssm_k, A_ssm_D)
    x = x + _B_ref(_layernorm(x, axis=-1), B_W_gate, B_W_up, B_W_down)
    return x
```

```python
class Asm:
    def __init__(self):
        self.lines = []
        self.vm = []
        self.lg = []
        self.lbl = 0
        self.issued = {}
    def e(self, s):
        self.lines.append("    " + s)
    def raw(self, s):
        self.lines.append(s)
    def label(self, name):
        self.lines.append(name + ":")
    def newlabel(self, p="L"):
        self.lbl += 1
        return "%s_%d" % (p, self.lbl)
    def c(self, s):
        self.lines.append("    ; " + s)
    def vmem(self, s, tag=None):
        if tag is not None and tag[0] in getattr(self, "skip", ()):
            self.issued[tag] = self.issued.get(tag, 0) + 1
            return
        self.e(s)
        self.vm.append(tag)
        self.issued[tag] = self.issued.get(tag, 0) + 1
        assert len(self.vm) <= 63, "vmcnt overflow"
    def lds(self, s, tag=None):
        self.e(s)
        self.lg.append(tag)
        self.issued[tag] = self.issued.get(tag, 0) + 1
        assert len(self.lg) <= 15, "lgkmcnt overflow"
    def must(self, tag, n=1):
        assert self.issued.get(tag, 0) == n, "op %r issued %d times, want %d" % (tag, self.issued.get(tag, 0), n)
    def _need(self, q, tags):
        last = -1
        for i, t in enumerate(q):
            if t in tags:
                last = i
        return last
    def wait_vm(self, *tags):
        last = self._need(self.vm, tags)
        if last < 0:
            return
        n = len(self.vm) - 1 - last
        self.e("s_waitcnt vmcnt(%d)" % n)
        self.vm = self.vm[last + 1:]
    def wait_lg(self, *tags):
        last = self._need(self.lg, tags)
        if last < 0:
            return
        n = len(self.lg) - 1 - last
        self.e("s_waitcnt lgkmcnt(%d)" % n)
        self.lg = self.lg[last + 1:]
    def wait_vm0(self):
        self.e("s_waitcnt vmcnt(0)")
        self.vm = []
    def wait_lg0(self):
        self.e("s_waitcnt lgkmcnt(0)")
        self.lg = []
    def text(self):
        return "\n".join(self.lines) + "\n"

def v(i, n=1):
    return "v%d" % i if n == 1 else "v[%d:%d]" % (i, i + n - 1)
def a(i, n=1):
    return "a%d" % i if n == 1 else "a[%d:%d]" % (i, i + n - 1)
def s(i, n=1):
    return "s%d" % i if n == 1 else "s[%d:%d]" % (i, i + n - 1)

def kernel_begin(A, name):
    A.raw(".globl %s" % name)
    A.raw(".p2align 8")
    A.raw(".type %s,@function" % name)
    A.raw("%s:" % name)
    A.vm = []
    A.lg = []
    A.issued = {}

def descriptor(name, vgpr, accum, sgpr=96, wgy=False):
    r = [".p2align 6",
         ".amdhsa_kernel %s" % name,
         "  .amdhsa_next_free_vgpr %d" % vgpr,
         "  .amdhsa_next_free_sgpr %d" % sgpr,
         "  .amdhsa_accum_offset %d" % accum,
         "  .amdhsa_group_segment_fixed_size 0",
         "  .amdhsa_kernarg_size 104",
         "  .amdhsa_user_sgpr_count 2",
         "  .amdhsa_user_sgpr_kernarg_segment_ptr 1",
         "  .amdhsa_system_sgpr_workgroup_id_x 1"]
    if wgy:
        r.append("  .amdhsa_system_sgpr_workgroup_id_y 1")
    r += ["  .amdhsa_float_denorm_mode_32 3",
          "  .amdhsa_float_denorm_mode_16_64 3",
          ".end_amdhsa_kernel"]
    return "\n".join(r) + "\n"

def srd(A, d, base, nbytes, off=0):
    if off:
        A.e("s_add_u32 s%d, s%d, 0x%x" % (d, base, off))
        A.e("s_addc_u32 s%d, s%d, 0" % (d + 1, base + 1))
    else:
        A.e("s_mov_b32 s%d, s%d" % (d, base))
        A.e("s_mov_b32 s%d, s%d" % (d + 1, base + 1))
    A.e("s_mov_b32 s%d, 0x%x" % (d + 2, nbytes))
    A.e("s_mov_b32 s%d, 0x20000" % (d + 3))
```

```python
from asmlib import *
from layout import *

def g1_steps():
    st = []
    for ks in range(18):
        for u in range(4):
            for m in range(2):
                st.append(("g1", u, m, ks))
    for u in range(4, 9):
        for ks in range(18):
            for m in range(2):
                st.append(("g1", u, m, ks))
    return st
def g2_steps(KA):
    st = []
    for kk in range(KA):
        for i in range(9):
            st.append(("g2", i, 0, kk))
    for i in range(9):
        for kk in range(KA, 18):
            st.append(("g2", i, 0, kk))
    return st

def gen_ffn(A, name="ffn_kernel", stamp=False, opt=None):
    opt = opt or {}
    PD = opt.get("PD", 5); NB = PD + 1
    assert NB <= 6
    kernel_begin(A, name)
    A.skip = opt.get("skip", "")
    Lend = A.newlabel("FFEND")
    sW, sX, sH, sP, sF = 8, 12, 16, 20, 24
    sWoff, sXoff, sHoff, sM0b, sT, sT2, sT3, sPoff, sFoff, sWave, sJq, sHst = 28, 29, 30, 31, 32, 33, 34, 35, 36, 37, 38, 39
    sTmp, sCnt, sTail = 40, 41, 7
    vL16, vL8, vRd, vP16, vP8, vZ, vFv = 1, 2, 3, 4, 5, 6, 7
    vPoll = 8
    vWB = 16
    vAcc = 40
    vU = 184
    vXo = 224
    def opreg(ks, tt, half=None):
        i = ks * 4 + tt
        if i < 64:
            return a(i * 4, 4)
        b = vXo + (i - 64) * 4
        if half is None:
            return v(b, 4)
        return v(b + 2 * half, 2)
    slot = {0: vAcc, 1: vAcc + 32, 2: vAcc + 64, 3: vAcc + 96, 4: vU, 5: vAcc, 6: vAcc + 32, 7: vAcc + 64, 8: vU}
    def acc1(u, m, tt):
        return slot[u] + m * 16 + tt * 4
    def acc2(i, tt):
        return vAcc + i * 16 + tt * 4
    nst = [0]
    def do_stamp():
        if stamp:
            A.e("s_memtime s[%d:%d]" % (48 + 4 * nst[0], 49 + 4 * nst[0]))
            A.e("s_memrealtime s[%d:%d]" % (50 + 4 * nst[0], 51 + 4 * nst[0]))
            A.wait_lg0()
            nst[0] += 1
    A.e("s_cmp_ge_u32 s2, 256")
    A.e("s_cbranch_scc1 %s" % Lend)
    A.e("s_load_dwordx2 s[4:5], s[0:1], 96")
    do_stamp()
    A.e("s_mov_b32 s6, 0")
    A.e("v_lshrrev_b32 v8, 6, v0")
    A.e("v_and_b32 v9, 63, v0")
    A.e("v_readfirstlane_b32 s%d, v8" % sWave)
    A.e("v_lshlrev_b32 v%d, 4, v9" % vL16)
    A.e("v_lshlrev_b32 v%d, 3, v9" % vL8)
    A.e("v_and_b32 v10, 15, v9")
    A.e("v_lshrrev_b32 v11, 4, v9")
    A.e("v_lshlrev_b32 v10, 4, v10")
    A.e("v_lshrrev_b32 v12, 1, v11")
    A.e("v_lshl_add_u32 v10, v12, 8, v10")
    A.e("v_and_b32 v11, 1, v11")
    A.e("v_lshl_add_u32 v%d, v11, 3, v10" % vP8)
    A.e("v_mov_b32 v%d, 0" % vZ)
    A.e("s_and_b32 s42, s2, 7")
    A.e("s_lshr_b32 s43, s2, 3")
    A.e("s_and_b32 s%d, s43, 3" % sJq)
    A.e("s_lshr_b32 s43, s43, 2")
    A.e("s_lshl_b32 s44, s42, 2")
    A.e("s_add_u32 s44, s44, s%d" % sJq)
    A.e("s_mul_i32 s%d, s44, %d" % (sWoff, WSTRIDE))
    A.e("s_mul_i32 s%d, s%d, 3072" % (sM0b, sWave))
    A.e("s_add_u32 s%d, s%d, s%d" % (sWoff, sWoff, sM0b))
    A.e("s_lshl_b32 s45, s43, 2")
    A.e("s_add_u32 s45, s45, s%d" % sWave)
    A.e("s_mul_i32 s%d, s45, 73728" % sXoff)
    A.e("s_mul_i32 s46, s42, %d" % (32 * 73728))
    A.e("s_add_u32 s%d, s46, s%d" % (sHoff, sXoff))
    A.e("s_lshl_b32 s47, s%d, 12" % sJq)
    A.e("s_add_u32 s%d, s%d, s47" % (sHst, sHoff))
    A.e("s_lshl_b32 s47, s%d, 14" % sJq)
    A.e("s_add_u32 s%d, s%d, s47" % (sPoff, sHoff))
    A.e("s_lshr_b32 s46, s%d, 1" % sJq)
    A.e("s_lshl_b32 s46, s46, 12")
    A.e("s_and_b32 s47, s%d, 1" % sJq)
    A.e("s_lshl_b32 s47, s47, 9")
    A.e("s_add_u32 s46, s46, s47")
    A.e("s_add_u32 s46, s46, 65536")
    A.e("s_add_u32 s%d, s46, s%d" % (sTail, sHoff))
    A.e("s_lshl_b32 s47, s43, 3")
    A.e("s_add_u32 s47, s47, s42")
    A.e("s_lshl_b32 s%d, s47, 7" % sFoff)
    A.e("s_waitcnt lgkmcnt(0)")
    srd(A, sW, 4, SZ_W, OFF_W)
    srd(A, sX, 4, SZ_XN, OFF_XN)
    srd(A, sH, 4, SZ_HX, OFF_HX)
    srd(A, sP, 4, SZ_P, OFF_P)
    srd(A, sF, 4, SZ_FL, OFF_FL)

    steps = g1_steps() + g2_steps(KA)
    NS = len(steps)
    bars = opt.get("bars") or (list(range(12)) + [12, 14, 16, 18, 20, 21, 22, 23, 24, 25, 26, 27, 28, 29, 30, 31, 32, 33, 34, 35, 37, 39])
    def bar_cover(x):
        i = bars.index(x)
        nx = bars[i + 1] if i + 1 < len(bars) else 41
        return list(range(x, nx))
    def dma_ops(c):
        ops = []
        def f0(c=c):
            A.e("s_add_u32 m0, s%d, %d" % (sM0b, (c % 12) * 12288))
            A.e("s_add_u32 s%d, s%d, %d" % (sT, sWoff, c * 12288))
            A.vmem("buffer_load_dwordx4 v%d, s[%d:%d], s%d offen lds" % (vL16, sW, sW + 3, sT), ("W", c))
        ops.append(f0)
        for q in (1, 2):
            ops.append(lambda q=q, c=c: A.vmem("buffer_load_dwordx4 v%d, s[%d:%d], s%d offen offset:%d lds"
                                                % (vL16, sW, sW + 3, sT, q * 1024), ("W", c)))
        return ops
    def x_ops(ks):
        ops = []
        for tt in range(4):
            def f(ks=ks, tt=tt):
                if tt == 0:
                    A.e("s_add_u32 s%d, s%d, %d" % (sT2, sXoff, ks * 4096))
                A.vmem("buffer_load_dwordx4 %s, v%d, s[%d:%d], s%d offen offset:%d"
                       % (opreg(ks, tt), vL16, sX, sX + 3, sT2, tt * 1024), ("X", ks, tt))
            ops.append(f)
        return ops
    def h_ops(kk):
        ops = []
        for tt in range(4):
            if kk < 16:
                def f(kk=kk, tt=tt):
                    if tt == 0:
                        A.e("s_add_u32 s%d, s%d, %d" % (sT2, sHoff, kk * 4096))
                    A.vmem("buffer_load_dwordx4 %s, v%d, s[%d:%d], s%d offen offset:%d sc1"
                           % (opreg(kk, tt), vL16, sH, sH + 3, sT2, tt * 1024), ("H", kk, tt))
                ops.append(f)
            else:
                for hf in range(2):
                    def f(kk=kk, tt=tt, hf=hf):
                        if tt == 0 and hf == 0:
                            A.e("s_add_u32 s%d, s%d, %d" % (sT2, sHoff, kk * 4096))
                        A.vmem("buffer_load_dwordx2 %s, v%d, s[%d:%d], s%d offen offset:%d sc1"
                               % (opreg(kk, tt, hf), vL8, sH, sH + 3, sT2, tt * 1024 + hf * 512), ("H", kk, tt))
                    ops.append(f)
        return ops
    def epi1_ops(u):
        ops = []
        ue = u & ~1
        for tt in range(4):
            g = acc1(u, 0, tt); up = acc1(u, 1, tt); q = acc1(ue, 1, tt) + 2 * (u & 1)
            for r in range(4):
                ops.append(lambda g=g, r=r: A.e("v_max_f32 v%d, 0, v%d" % (g + r, g + r)))
            for r in range(4):
                ops.append(lambda g=g, up=up, r=r: A.e("v_mul_f32 v%d, v%d, v%d" % (g + r, g + r, up + r)))
            for p in range(2):
                ops.append(lambda g=g, q=q, p=p: A.e("v_cvt_pk_bf16_f32 v%d, v%d, v%d" % (q + p, g + 2 * p, g + 2 * p + 1)))
            if u & 1:
                def st(u=u, tt=tt, ue=ue):
                    if tt == 0:
                        A.e("s_add_u32 s%d, s%d, %d" % (sT3, sHst, (u // 2) * 16384))
                    qq = acc1(ue, 1, tt)
                    A.vmem("buffer_store_dwordx4 v[%d:%d], v%d, s[%d:%d], s%d offen offset:%d sc1"
                           % (qq, qq + 3, vL16, sH, sH + 3, sT3, tt * 1024), ("S", u))
                ops.append(st)
            elif u == 8:
                def st(tt=tt):
                    qq = acc1(8, 1, tt)
                    A.vmem("buffer_store_dwordx2 v[%d:%d], v%d, s[%d:%d], s%d offen offset:%d sc1"
                           % (qq, qq + 1, vL8, sH, sH + 3, sTail, tt * 1024), ("S", 8))
                ops.append(st)
        return ops
    pfl = opt.get("pflags", "sc1")
    def epi2_ops(i):
        ops = []
        ie = i & ~1
        for tt in range(4):
            ac = acc2(i, tt); q = acc2(ie, tt) + 2 * (i & 1)
            for p in range(2):
                ops.append(lambda ac=ac, q=q, p=p: A.e("v_cvt_pk_bf16_f32 v%d, v%d, v%d" % (q + p, ac + 2 * p, ac + 2 * p + 1)))
            if i & 1:
                def st(i=i, tt=tt, ie=ie):
                    if tt == 0:
                        A.e("s_add_u32 s%d, s%d, %d" % (sT3, sPoff, (i // 2) * 4096))
                    qq = acc2(ie, tt)
                    A.vmem("buffer_store_dwordx4 v[%d:%d], v%d, s[%d:%d], s%d offen offset:%d %s"
                           % (qq, qq + 3, vL16, sP, sP + 3, sT3, tt * 1024, pfl), ("P", i))
                ops.append(st)
            elif i == 8:
                def st(tt=tt):
                    qq = acc2(8, tt)
                    A.vmem("buffer_store_dwordx2 v[%d:%d], v%d, s[%d:%d], s%d offen offset:%d %s"
                           % (qq, qq + 1, vP8, sP, sP + 3, sTail, tt * 1024, pfl), ("P", 8))
                ops.append(st)
        return ops
    def flag_store(val):
        L = A.newlabel("FS")
        A.e("v_mov_b32 v%d, %d" % (vFv, val))
        A.e("s_lshl_b32 s%d, s%d, 2" % (sTmp, sJq))
        A.e("s_add_u32 s%d, s%d, s%d" % (sTmp, sTmp, sFoff))
        A.e("s_lshl_b32 s%d, s%d, 20" % (sCnt, sWave))
        A.e("s_add_u32 s%d, s%d, s%d" % (sTmp, sTmp, sCnt))
        A.vmem("buffer_store_dword v%d, v%d, s[%d:%d], s%d offen sc1" % (vFv, vZ, sF, sF + 3, sTmp), ("F", val))
    def poll_issue(val):
        A.vmem("buffer_load_dwordx4 v[%d:%d], v%d, s[%d:%d], s%d offen sc1" % (vPoll, vPoll + 3, vZ, sF, sF + 3, sFoff), ("Q", val))
    slow = []
    def poll_check(val):
        A.wait_vm(("Q", val))
        Lok = A.newlabel("PK"); Lsl = A.newlabel("PS")
        A.e("v_min_u32 v%d, v%d, v%d" % (vPoll, vPoll, vPoll + 1))
        A.e("v_min3_u32 v%d, v%d, v%d, v%d" % (vPoll, vPoll, vPoll + 2, vPoll + 3))
        A.e("s_nop 0")
        A.e("v_readfirstlane_b32 s%d, v%d" % (sTmp, vPoll))
        A.e("s_cmp_lt_u32 s%d, %d" % (sTmp, val))
        A.e("s_cbranch_scc1 %s" % Lsl)
        A.label(Lok)
        slow.append((Lsl, Lok, val))

    LAT = opt.get("LAT", 16)
    GAP = opt.get("GAP", 5)
    PRO = opt.get("PRO", 16)
    P1i, P1c = opt.get("P1", (274, 286))
    P2i, P2c = opt.get("P2", (338, 348))
    P3i, P3c = opt.get("P3", (374, 384))
    barstep = {c: 12 * c - PD for c in bars}
    def bar_of(c):
        return max(b for b in bars if b <= c)
    Q = {"W": [], "X": [], "S": []}
    for c in range(41):
        e = -1 if c < 12 else barstep[min(b for b in bars if b >= c - 10)] + 0.3
        dl = barstep[bar_of(c)]
        Q["W"] += [[e, dl, op] for op in dma_ops(c)]
    for ks in range(18):
        Q["X"] += [[-1, 8 * ks, op] for op in x_ops(ks)]
    def hneed(kk):
        return 324 + 9 * kk if kk < KA else 324 + 9 * KA + (kk - KA)
    for kk in range(18):
        e = 288 + 2 * kk + 2 if kk < 12 else (P2c if kk < 16 else P3c)
        Q["X"] += [[e, hneed(kk) - opt.get("HEARLY", 10), op] for op in h_ops(kk)]
    ev = {}
    def at(i, f):
        ev.setdefault(i, []).append(f)
    at(P1i, lambda: poll_issue(1)); at(P1c, lambda: poll_check(1))
    at(P2i, lambda: poll_issue(2)); at(P2c, lambda: poll_check(2))
    at(P3i, lambda: poll_issue(3)); at(P3c, lambda: poll_check(3))
    pub = {21: (1, [("S", 1), ("S", 3), ("S", 5)]), 27: (2, [("S", 7)]), 30: (3, [("S", 8)])}
    eq = []
    def pick(now):
        best = None
        for k, q in Q.items():
            if q and q[0][0] <= now and (best is None or q[0][1] < Q[best][0][1]):
                best = k
        return best
    for _ in range(PRO):
        Q[pick(-1)].pop(0)[2]()
    def issue_read(i):
        if i >= NS:
            return
        c = i // 12
        if i % 12 == 0 and c in bars:
            tags = [("W", x) for x in bar_cover(c)]
            for tg in tags:
                while A.issued.get(tg, 0) < 3:
                    print("late W", tg, "at step", i)
                    Q["W"].pop(0)[2]()
            if c in pub:
                for tg in pub[c][1]:
                    A.must(tg, 4)
                tags += pub[c][1]
            A.wait_vm(*tags)
            if not opt.get("nobar"):
                A.e("s_barrier")
            if c in pub:
                flag_store(pub[c][0])
        if i % 36 == 0:
            A.e("v_add_u32 v%d, %d, v%d" % (vRd, ((i // 36) % 4) * 36864, vL16))
        A.lds("ds_read_b128 v[%d:%d], v%d offset:%d" % (vWB + (i % NB) * 4, vWB + (i % NB) * 4 + 3, vRd, (i % 36) * 1024), ("R", i))
    for i in range(PD):
        issue_read(i)
    last = -100
    log = []
    for i, (kind, u, m, ks) in enumerate(steps):
        if stamp and i in (144, 324, 324 + 9 * KA):
            do_stamp()
        for f in ev.get(i, []):
            f()
        wb = v(vWB + (i % NB) * 4, 4)
        if ks == 0:
            pend = set(e[2] for e in eq) | set(e[3] for e in Q["S"])
            if kind == "g1":
                bad = [("S", o | 1) for o in range(u) if slot[o] == slot[u]] + [("S", o) for o in range(u) if slot[o] == slot[u]]
            else:
                bad = [("S", o) for o in range(8)]
            assert not (pend & set(bad)), (i, pend)
        A.wait_lg(("R", i))
        for tt in range(4):
            tg = ("X" if kind == "g1" else "H", ks, tt)
            while A.issued.get(tg, 0) < (2 if (kind == "g2" and ks >= 16) else 1):
                assert Q["X"][0][0] <= i
                print("late", tg, "at step", i)
                Q["X"].pop(0)[2]()
            A.wait_vm(tg)
            ac = v(acc1(u, m, tt) if kind == "g1" else acc2(u, tt), 4)
            A.e("v_mfma_f32_16x16x32_bf16 %s, %s, %s, %s" % (ac, wb, opreg(ks, tt), "0" if ks == 0 else ac))
            now = i + tt / 4.0
            slotn = 4 * i + tt
            did = 0
            if tt == 0:
                issue_read(i + PD)
                did = 1
            if slotn - last >= GAP and len(A.vm) < 60:
                k = pick(now)
                if k is not None:
                    ent = Q[k].pop(0)
                    ent[2]()
                    log.append((now, k, ent[1]))
                    last = slotn - (2 if "dwordx2" in A.lines[-1] else 0)
                    did += 1
            for _ in range(2 - did):
                if eq and eq[0][0] <= i:
                    e = eq.pop(0)
                    if e[3]:
                        Q["S"].append([now, now + opt.get("SDL", -100), e[1], e[2]])
                    else:
                        e[1]()
        if kind == "g1" and ks == 17 and m == 1:
            start = max(i + 3, 144 + 2)
            eq += [(start, op, ("S", u), op.__name__ == "st") for op in epi1_ops(u)]
        if kind == "g2" and ks == 17:
            eq += [(i + 3, op, ("P", u), op.__name__ == "st") for op in epi2_ops(u)]
    assert not Q["W"] and not Q["X"]
    if opt.get("log"):
        for l in log: print(l)
    for e in Q["S"]:
        e[2]()
    A.e("s_nop 7")
    for e in eq:
        e[1]()
    if stamp:
        do_stamp()
        A.wait_vm0()
        do_stamp()
        srd(A, 44, 4, 0x100000, OFF_TS)
        A.e("s_lshl_b32 s40, s2, 2")
        A.e("s_add_u32 s40, s40, s%d" % sWave)
        A.e("s_lshl_b32 s40, s40, 6")
        for k in range(nst[0]):
            A.e("v_mov_b32 v8, s%d" % (48 + 4 * k))
            A.e("v_mov_b32 v9, s%d" % (50 + 4 * k))
            A.e("buffer_store_dwordx2 v[8:9], v%d, s[44:47], s40 offen offset:%d" % (vZ, k * 8))
            A.e("s_nop 4")
        A.e("v_mov_b32 v8, s6")
        A.e("buffer_store_dword v8, v%d, s[44:47], s40 offen offset:56" % vZ)
    A.label(Lend)
    A.e("s_endpgm")
    for Lsl, Lok, val in slow:
        A.label(Lsl)
        if stamp:
            A.e("s_add_u32 s6, s6, %d" % (1 << (10 * (val - 1))))
        A.e("s_mov_b32 s%d, 0x200000" % sCnt)
        Lp = A.newlabel("PL")
        A.label(Lp)
        A.e("buffer_load_dwordx4 v[%d:%d], v%d, s[%d:%d], s%d offen sc1" % (vPoll, vPoll + 3, vZ, sF, sF + 3, sFoff))
        A.e("s_waitcnt vmcnt(0)")
        A.e("v_min_u32 v%d, v%d, v%d" % (vPoll, vPoll, vPoll + 1))
        A.e("v_min3_u32 v%d, v%d, v%d, v%d" % (vPoll, vPoll, vPoll + 2, vPoll + 3))
        A.e("s_nop 0")
        A.e("v_readfirstlane_b32 s%d, v%d" % (sTmp, vPoll))
        A.e("s_cmp_ge_u32 s%d, %d" % (sTmp, val))
        A.e("s_cbranch_scc1 %s" % Lok)
        if stamp:
            A.e("s_add_u32 s6, s6, %d" % (1 << (10 * (val - 1))))
        A.e("s_sub_u32 s%d, s%d, 1" % (sCnt, sCnt))
        A.e("s_cmp_lg_u32 s%d, 0" % sCnt)
        A.e("s_cbranch_scc1 %s" % Lp)
        A.e("s_branch %s" % Lok)
    return descriptor(name, 512, 256)
```

```python
from asmlib import *
from layout import *
from ffn import g1_steps, g2_steps

def gen_kv(A, name="kv_kernel"):
    kernel_begin(A, name)
    Lend = A.newlabel("KVEND"); Lprep = A.newlabel("KVPREP")
    A.e("s_cmp_ge_u32 s2, 432")
    A.e("s_cbranch_scc1 %s" % Lend)
    A.e("s_cmp_ge_u32 s2, 288")
    A.e("s_cbranch_scc1 %s" % Lprep)
    A.e("s_load_dwordx4 s[4:7], s[0:1], %d" % A_K)
    A.e("s_load_dwordx2 s[8:9], s[0:1], %d" % A_SK)
    A.e("s_load_dwordx2 s[10:11], s[0:1], %d" % A_WS)
    A.e("s_mul_i32 s12, s2, 7282")
    A.e("s_lshr_b32 s12, s12, 16")
    A.e("s_mul_i32 s13, s12, 9")
    A.e("s_sub_u32 s13, s2, s13")
    A.e("v_and_b32 v1, 31, v0")
    A.e("v_lshrrev_b32 v2, 5, v0")
    A.e("v_lshlrev_b32 v2, 3, v2")
    A.e("s_lshl_b32 s14, s12, 6")
    A.e("v_add_u32 v2, s14, v2")
    A.e("s_lshl_b32 s15, s13, 7")
    A.e("v_lshl_add_u32 v3, v1, 2, s15")
    A.e("s_movk_i32 s16, 1152")
    A.e("v_mad_u32_u24 v4, v2, s16, v3")
    A.e("v_subrev_u32 v5, 1152, v4")
    A.e("v_subrev_u32 v6, 2304, v4")
    A.e("v_subrev_u32 v7, 3456, v4")
    A.e("v_lshlrev_b32 v8, 2, v3")
    A.e("v_lshlrev_b32 v9, 11, v3")
    A.e("v_lshl_add_u32 v9, v2, 1, v9")
    A.e("s_movk_i32 s17, 4608")
    A.e("s_movk_i32 s18, 4096")
    A.e("s_waitcnt lgkmcnt(0)")
    srd(A, 20, 4, SZ_ACT)
    srd(A, 24, 6, SZ_ACT)
    srd(A, 28, 8, 576 * 8)
    srd(A, 32, 10, SZ_ACT, OFF_U)
    vK, vV, vS = 16, 28, 36
    A.e("buffer_load_dwordx4 v[36:39], v8, s[28:31], 0 offen")
    A.e("buffer_load_dword v16, v7, s[20:23], 0 offen")
    A.e("buffer_load_dword v17, v6, s[20:23], 0 offen")
    A.e("buffer_load_dword v18, v5, s[20:23], 0 offen")
    for i in range(8):
        A.e("buffer_load_dword v%d, v4, s[20:23], %s offen offset:%d" % (19 + i, "0" if i < 4 else "s17", (i % 4) * 1152))
    for i in range(8):
        A.e("buffer_load_dword v%d, v4, s[24:27], %s offen offset:%d" % (28 + i, "0" if i < 4 else "s17", (i % 4) * 1152))
    A.e("s_waitcnt vmcnt(8)")
    for c in range(2):
        for q in range(2):
            A.e("v_lshlrev_b32 v%d, 16, v%d" % (40 + 4 * c + 2 * q, 36 + 2 * c + q))
            A.e("v_and_b32 v%d, 0xffff0000, v%d" % (41 + 4 * c + 2 * q, 36 + 2 * c + q))
    for i in range(11):
        A.e("v_lshlrev_b32 v%d, 16, v%d" % (48 + i, 16 + i))
        A.e("v_and_b32 v%d, 0xffff0000, v%d" % (16 + i, 16 + i))
    kb = [48, 16]
    for c in range(2):
        for i in range(8):
            d = 60 + 8 * c + i
            A.e("v_mul_f32 v%d, v%d, v%d" % (d, kb[c] + i, 43 + 4 * c))
            A.e("v_fmac_f32 v%d, v%d, v%d" % (d, kb[c] + i + 1, 42 + 4 * c))
            A.e("v_fmac_f32 v%d, v%d, v%d" % (d, kb[c] + i + 2, 41 + 4 * c))
            A.e("v_fmac_f32 v%d, v%d, v%d" % (d, kb[c] + i + 3, 40 + 4 * c))
    A.e("s_waitcnt vmcnt(0)")
    for i in range(8):
        A.e("v_lshlrev_b32 v48, 16, v%d" % (28 + i))
        A.e("v_and_b32 v49, 0xffff0000, v%d" % (28 + i))
        A.e("v_mul_f32 v%d, v%d, v48" % (60 + i, 60 + i))
        A.e("v_mul_f32 v%d, v%d, v49" % (68 + i, 68 + i))
    for c in range(2):
        for p in range(4):
            A.e("v_cvt_pk_bf16_f32 v%d, v%d, v%d" % (80 + 4 * c + p, 60 + 8 * c + 7 - 2 * p, 60 + 8 * c + 6 - 2 * p))
    A.e("buffer_store_dwordx4 v[80:83], v9, s[32:35], 0 offen")
    A.e("buffer_store_dwordx4 v[84:87], v9, s[32:35], s18 offen")
    A.e("s_endpgm")
    A.label(Lprep)
    gen_prep_body(A, "D", 288, 1)
    A.label(Lend)
    A.e("s_endpgm")
    return descriptor(name, 88, 88, sgpr=40)

LSZ = 33280
USZ = 79 * 96
CONV_LDS = 4 * LSZ + 4 * USZ

def gen_conv(A, name="conv_kernel", nprep=96):
    kernel_begin(A, name)
    Lend = A.newlabel("CVEND"); Lprep = A.newlabel("CVPREP")
    A.e("s_cmp_ge_u32 s2, %d" % (144 + nprep))
    A.e("s_cbranch_scc1 %s" % Lend)
    A.e("s_cmp_ge_u32 s2, 144")
    A.e("s_cbranch_scc1 %s" % Lprep)
    A.e("s_load_dwordx4 s[4:7], s[0:1], %d" % A_H)
    A.e("s_load_dwordx2 s[8:9], s[0:1], %d" % A_WS)
    A.e("v_lshrrev_b32 v1, 6, v0")
    A.e("v_and_b32 v2, 63, v0")
    A.e("v_readfirstlane_b32 s10, v1")
    A.e("s_lshl_b32 s11, s2, 2")
    A.e("s_add_u32 s11, s11, s10")
    A.e("s_lshl_b32 s12, s11, 12")
    A.e("s_mul_i32 s13, s10, %d" % LSZ)
    A.e("s_mul_i32 s14, s10, %d" % USZ)
    A.e("s_add_u32 s14, s14, %d" % (4 * LSZ))
    A.e("v_lshlrev_b32 v3, 1, v2")
    A.e("v_subrev_u32 v4, 64, v3")
    A.e("v_lshlrev_b32 v5, 4, v2")
    A.e("v_lshrrev_b32 v6, 3, v2")
    A.e("v_and_b32 v7, 7, v2")
    A.e("v_sub_u32 v8, v7, v6")
    A.e("v_lshlrev_b32 v8, 1, v8")
    A.e("v_lshlrev_b32 v9, 4, v6")
    A.e("v_lshlrev_b32 v10, 1, v7")
    A.e("v_sub_u32 v9, v10, v9")
    A.e("s_add_u32 s15, s13, 512")
    A.e("v_add_u32 v9, s15, v9")
    A.e("v_lshrrev_b32 v10, 2, v2")
    A.e("v_and_b32 v11, 3, v2")
    A.e("v_mul_u32_u24 v10, 96, v10")
    A.e("v_lshl_add_u32 v10, v11, 4, v10")
    A.e("s_add_u32 s15, s14, %d" % (15 * 96))
    A.e("v_add_u32 v10, s15, v10")
    A.e("v_add_u32 v11, s14, v5")
    A.e("v_and_b32 v12, 15, v2")
    A.e("v_lshrrev_b32 v13, 4, v2")
    A.e("v_lshrrev_b32 v14, 3, v12")
    A.e("v_lshlrev_b32 v14, 2, v14")
    A.e("v_xor_b32 v14, v12, v14")
    A.e("v_lshlrev_b32 v15, 3, v13")
    A.e("v_sub_u32 v14, v14, v15")
    A.e("v_lshlrev_b32 v14, 4, v14")
    A.e("s_add_u32 s15, s13, %d" % (25 * 16))
    A.e("v_add_u32 v14, s15, v14")
    A.e("v_mul_u32_u24 v15, 96, v12")
    A.e("v_lshl_add_u32 v15, v13, 4, v15")
    A.e("v_add_u32 v15, s14, v15")
    A.e("s_waitcnt lgkmcnt(0)")
    A.e("s_add_u32 s16, s4, s12")
    A.e("s_addc_u32 s17, s5, 0")
    A.e("s_movk_i32 s18, 4096")
    A.e("s_mov_b32 s19, 0x20000")
    srd(A, 20, 8, SZ_ACT, OFF_U)
    srd(A, 24, 8, SZ_ACT, OFF_Y)
    srd(A, 28, 6, 576 * 2)
    vA, vB = 14, 15
    for r in range(4):
        A.vmem("buffer_load_dwordx4 v[%d:%d], v5, s[20:23], s12 offen offset:%d" % (16 + 4 * r, 19 + 4 * r, r * 1024), ("u", r))
    A.vmem("buffer_load_ushort v32, v8, s[16:19], 0 offen", ("fx",))
    A.e("v_mov_b32 v33, 0")
    A.e("s_lshl_b32 s15, s11, 1")
    A.vmem("buffer_load_ushort v34, v33, s[28:31], s15 offen", ("D",))
    def piece(p):
        A.e("s_add_u32 m0, s13, %d" % (p * 1024))
        if p == 0:
            A.e("s_nop 0")
            A.vmem("buffer_load_dwordx4 v4, s[16:19], 0 offen lds", ("L", p))
        else:
            A.e("s_movk_i32 s15, %d" % (128 * p - 64))
            if p == 32:
                A.e("s_mov_b64 exec, 0xffffffff")
            A.vmem("buffer_load_dwordx4 v3, s[16:19], s15 offen lds", ("L", p))
            if p == 32:
                A.e("s_mov_b64 exec, -1")
    def need_pieces(d):
        r = set()
        for q in range(4):
            lo = 32 * (d + 16 * q) - 31; hi = 32 * (d + 16 * q) + 24
            r |= {(lo + 32) // 64, (hi + 32) // 64}
        return sorted(r)
    order = []
    for d in range(16):
        for p in need_pieces(d):
            if p not in order:
                order.append(p)
    assert sorted(order) == list(range(33)) or sorted(order) == list(range(32)), order
    for p in order:
        piece(p)
    for i in range(36, 40):
        A.e("v_mov_b32 v%d, 0" % i)
    A.lds("ds_write_b128 v11, v[36:39]", ("z",))
    A.lds("ds_write_b128 v11, v[36:39] offset:416", ("z",))
    for r in range(4):
        A.wait_vm(("u", r))
        A.lds("ds_write_b128 v10, v[%d:%d] offset:%d" % (16 + 4 * r, 19 + 4 * r, r * 16 * 96), ("z",))
    A.wait_vm(("L", 0))
    A.lds("ds_write_b16 v9, v32", ("z",))
    vOp = 64; vAcc = 32 + 8
    vAcc = 160
    def areg(d, q, mt): return vOp + (d % 2) * 48 + (q * 2 + mt) * 4
    def breg(d, e): return vOp + (d % 2) * 48 + 32 + e * 4
    def reads(d):
        ops = []
        for e in range(4):
            ops.append(lambda d=d, e=e: A.lds("ds_read_b128 v[%d:%d], v%d offset:%d" % (breg(d, e), breg(d, e) + 3, vB, (16 * e - d + 15) * 96), ("B", d, e)))
        for q in range(4):
            for mt in range(2):
                ops.append(lambda d=d, q=q, mt=mt: A.lds("ds_read_b128 v[%d:%d], v%d offset:%d" % (areg(d, q, mt), areg(d, q, mt) + 3, vA, (32 * (d + 16 * q) + 16 * mt) * 16), ("A", d, q, mt)))
        return [ops[0], ops[4], ops[5], ops[1], ops[2], ops[3]] + ops[6:]
    A.wait_lg0()
    A.wait_vm(*[("L", p) for p in need_pieces(0)])
    for op in reads(0):
        op()
    for d in range(16):
        nxt = []
        if d < 15:
            nxt = reads(d + 1)
        first = True
        for q in range(4):
            for nt in range(q, 4):
                for mt in range(2):
                    A.wait_lg(("B", d, nt - q), ("A", d, q, mt))
                    ac = v(vAcc + (nt * 2 + mt) * 4, 4)
                    A.e("v_mfma_f32_16x16x32_bf16 %s, %s, %s, %s" % (ac, v(areg(d, q, mt), 4), v(breg(d, nt - q), 4), "0" if (d == 0 and q == 0) else ac))
                    if nxt and len(A.lg) < 15:
                        if first:
                            A.wait_vm(*[("L", p) for p in need_pieces(d + 1)])
                            first = False
                        nxt.pop(0)()
        assert not nxt
    A.e("v_lshrrev_b32 v16, 1, v13")
    A.e("v_xor_b32 v16, v13, v16")
    A.e("v_lshrrev_b32 v17, 1, v16")
    A.e("v_lshlrev_b32 v17, 4, v17")
    A.e("v_and_b32 v18, 1, v16")
    A.e("v_xor_b32 v18, 1, v18")
    A.e("v_lshl_add_u32 v17, v18, 3, v17")
    A.e("v_mul_u32_u24 v18, 96, v12")
    A.e("v_add3_u32 v17, v17, v18, s14")
    for nt in range(4):
        for mt in range(2):
            k = nt * 2 + mt
            A.lds("ds_read_b64 v[%d:%d], v17 offset:%d" % (vOp + 2 * k, vOp + 2 * k + 1, (16 * nt + 15) * 96 + 32 * mt), ("K", k))
    A.e("v_lshlrev_b32 v34, 16, v34")
    A.e("v_mul_u32_u24 v18, 264, v12")
    A.e("v_lshl_add_u32 v18, v16, 5, v18")
    A.e("s_lshl_b32 s15, s10, 1")
    A.e("v_add_u32 v18, s15, v18")
    A.wait_lg0()
    A.e("s_barrier")
    for nt in range(4):
        for mt in range(2):
            k = nt * 2 + mt
            ac = vAcc + k * 4; kr = vOp + 2 * k
            A.e("v_and_b32 v20, 0xffff0000, v%d" % (kr + 1))
            A.e("v_lshlrev_b32 v21, 16, v%d" % (kr + 1))
            A.e("v_and_b32 v22, 0xffff0000, v%d" % kr)
            A.e("v_lshlrev_b32 v23, 16, v%d" % kr)
            for r in range(4):
                A.e("v_mul_f32 v%d, v%d, v34" % (20 + r, 20 + r))
            A.e("v_cvt_pk_bf16_f32 v24, v20, v21")
            A.e("v_cvt_pk_bf16_f32 v25, v22, v23")
            A.e("v_cvt_pk_bf16_f32 v26, v%d, v%d" % (ac, ac + 1))
            A.e("v_cvt_pk_bf16_f32 v27, v%d, v%d" % (ac + 2, ac + 3))
            for h in range(2):
                A.e("v_lshlrev_b32 v20, 16, v%d" % (24 + h))
                A.e("v_lshlrev_b32 v21, 16, v%d" % (26 + h))
                A.e("v_and_b32 v22, 0xffff0000, v%d" % (24 + h))
                A.e("v_and_b32 v23, 0xffff0000, v%d" % (26 + h))
                A.e("v_add_f32 v20, v20, v21")
                A.e("v_add_f32 v22, v22, v23")
                A.e("v_cvt_pk_bf16_f32 v%d, v20, v22" % (ac + h))
                off = nt * 16 * 264 + mt * 128 + h * 16
                A.e("ds_write_b16 v18, v%d offset:%d" % (ac + h, off))
                A.e("ds_write_b16_d16_hi v18, v%d offset:%d" % (ac + h, off + 8))
    A.e("s_waitcnt lgkmcnt(0)")
    A.e("s_barrier")
    A.e("v_lshrrev_b32 v20, 4, v0")
    A.e("v_and_b32 v21, 15, v0")
    A.e("v_mul_u32_u24 v20, 264, v20")
    A.e("v_lshl_add_u32 v20, v21, 4, v20")
    for r in range(4):
        A.e("ds_read_b64 v[%d:%d], v20 offset:%d" % (64 + 4 * r, 65 + 4 * r, r * 16 * 264))
        A.e("ds_read_b64 v[%d:%d], v20 offset:%d" % (66 + 4 * r, 67 + 4 * r, r * 16 * 264 + 8))
    A.e("v_lshlrev_b32 v21, 4, v0")
    A.e("s_lshl_b32 s15, s2, 14")
    A.e("s_waitcnt lgkmcnt(0)")
    for r in range(4):
        A.e("buffer_store_dwordx4 v[%d:%d], v21, s[24:27], s15 offen" % (64 + 4 * r, 67 + 4 * r))
        if r < 3:
            A.e("s_add_u32 s15, s15, 4096")
    A.e("s_endpgm")
    A.label(Lprep)
    gen_prep_body(A, "GU", 144, 3)
    A.label(Lend)
    A.e("s_endpgm")
    return descriptor(name, 192, 192, sgpr=64)

def gen_prep_body(A, kind, wg0, rounds):
    A.vm = []; A.lg = []
    A.e("s_load_dwordx4 s[4:7], s[0:1], %d" % A_WG)
    A.e("s_load_dwordx2 s[8:9], s[0:1], %d" % A_WD)
    A.e("s_load_dwordx2 s[10:11], s[0:1], %d" % A_WS)
    A.e("s_sub_u32 s12, s2, %d" % wg0)
    A.e("s_and_b32 s13, s12, 7")
    A.e("v_lshrrev_b32 v1, 6, v0")
    A.e("v_and_b32 v2, 63, v0")
    A.e("v_readfirstlane_b32 s14, v1")
    A.e("v_lshlrev_b32 v3, 4, v2")
    A.e("s_mul_i32 s15, s14, 9216")
    A.e("s_lshl_b32 s16, s13, 2")
    A.e("s_add_u32 s16, s16, s14")
    A.e("s_mul_i32 s16, s16, %d" % WSTRIDE)
    A.e("v_lshrrev_b32 v4, 4, v2")
    A.e("v_bfe_u32 v5, v2, 2, 2")
    A.e("v_and_b32 v6, 3, v2")
    A.e("v_lshl_add_u32 v7, v4, %d, v5" % (3 if kind == "GU" else 2))
    A.e("v_mul_u32_u24 v7, 1152, v7")
    A.e("s_lshl_b32 s17, s14, 8")
    A.e("v_lshl_add_u32 v8, v6, %d, v7" % (3 if kind == "GU" else 4))
    A.e("v_add_u32 v8, s17, v8")
    A.e("s_lshl_b32 s17, s14, 5")
    A.e("s_add_u32 s17, s17, 1024")
    A.e("v_lshl_add_u32 v9, v6, 3, v7")
    A.e("v_add_u32 v9, s17, v9")
    if kind == "GU":
        A.e("s_mov_b32 s18, 58255")
        A.e("s_movk_i32 s19, 8064")
        for i in range(9):
            A.e("s_add_u32 s17, s15, %d" % (i * 1024))
            A.e("v_add_u32 v%d, s17, v3" % (10 + i))
            A.e("v_lshrrev_b32 v20, 4, v%d" % (10 + i))
            A.e("v_mul_u32_u24 v20, s18, v20")
            A.e("v_lshrrev_b32 v20, 22, v20")
            A.e("v_mad_u32_u24 v%d, v20, s19, v%d" % (10 + i, 10 + i))
        A.e("s_bfe_u32 s20, s12, 0x10003")
        A.e("s_lshr_b32 s21, s12, 4")
        A.e("s_mul_i32 s22, s21, %d" % (32 * 9216))
        A.e("s_mul_i32 s23, s13, 1152")
        A.e("s_add_u32 s22, s22, s23")
        A.e("s_waitcnt lgkmcnt(0)")
        A.e("s_cmp_eq_u32 s20, 0")
        A.e("s_cselect_b32 s24, s4, s6")
        A.e("s_cselect_b32 s25, s5, s7")
    else:
        A.e("s_lshr_b32 s21, s12, 3")
        A.e("s_and_b32 s22, s21, 3")
        A.e("s_lshl_b32 s22, s22, 7")
        A.e("s_lshr_b32 s23, s21, 2")
        A.e("s_lshl_b32 s23, s23, 5")
        A.e("s_add_u32 s22, s22, s23")
        A.e("s_lshl_b32 s23, s21, 5")
        A.e("s_cmp_lt_u32 s21, 16")
        A.e("s_cselect_b32 s22, s22, s23")
        A.e("s_mul_i32 s23, s13, 576")
        A.e("s_add_u32 s22, s22, s23")
        A.e("s_mul_i32 s22, s22, 1152")
        A.e("s_add_u32 s22, s22, s15")
        A.e("s_waitcnt lgkmcnt(0)")
        A.e("s_mov_b32 s24, s8")
        A.e("s_mov_b32 s25, s9")
    A.e("s_mov_b32 s26, 0x%x" % (D * F * 2))
    A.e("s_mov_b32 s27, 0x20000")
    srd(A, 28, 10, SZ_W, OFF_W)
    for r in range(rounds):
        for i in range(9):
            A.e("s_add_u32 m0, s15, %d" % (r * 36864 + i * 1024))
            if kind == "GU":
                A.e("s_add_u32 s17, s22, %d" % (r * 6 * 32 * 9216))
                A.vmem("buffer_load_dwordx4 v%d, s[24:27], s17 offen lds" % (10 + i), ("l", r))
            else:
                A.e("s_add_u32 s17, s22, %d" % (i * 1024))
                A.vmem("buffer_load_dwordx4 v3, s[24:27], s17 offen lds", ("l", r))
    if kind == "GU":
        A.e("s_lshl_b32 s32, s21, 3")
        A.e("s_add_u32 s32, s32, s20")
        A.e("s_lshl_b32 s32, s32, 10")
        A.e("s_add_u32 s32, s32, s16")
        A.e("s_lshl_b32 s33, s21, 1")
        A.e("s_add_u32 s33, s33, s20")
        A.e("s_lshl_b32 s33, s33, 10")
        A.e("s_add_u32 s33, s33, s16")
    else:
        A.e("s_mul_i32 s32, s21, 9")
        A.e("s_add_u32 s32, s32, 324")
        A.e("s_add_u32 s33, s21, %d" % (324 + 9 * KA - KA))
        A.e("s_movk_i32 s34, 1024")
        A.e("s_cmp_lt_u32 s21, %d" % KA)
        A.e("s_cselect_b32 s32, s32, s33")
        A.e("s_cselect_b32 s34, s34, %d" % ((18 - KA) * 1024))
        A.e("s_lshl_b32 s32, s32, 10")
        A.e("s_add_u32 s32, s32, s16")
    for r in range(rounds):
        A.wait_vm(("l", r))
        A.e("s_barrier")
        if r:
            A.e("v_add_u32 v8, 36864, v8")
            A.e("v_add_u32 v9, 36864, v9")
        reg = lambda u: 24 + (r % 2) * 36 + u * 4
        def rd(u):
            for h in range(2):
                if kind == "GU":
                    off = h * 4608 + (32 * u if u < 8 else 0)
                else:
                    off = h * 18432 + (64 * (u // 2) + 8 * (u & 1) if u < 8 else 0)
                A.lds("ds_read_b64_tr_b16 v[%d:%d], v%d offset:%d" % (reg(u) + 2 * h, reg(u) + 2 * h + 1, 8 if u < 8 else 9, off), ("t", r, u))
        for u in range(7):
            rd(u)
        for u in range(9):
            A.wait_lg(("t", r, u))
            if kind == "GU":
                if u < 4:
                    A.e("s_add_u32 s17, s32, %d" % ((r * 48 + u * 2) * 1024))
                else:
                    A.e("s_add_u32 s17, s33, %d" % ((144 + (u - 4) * 36 + r * 12) * 1024))
                so = "s17"
            else:
                so = "s32"
            A.vmem("buffer_store_dwordx4 v[%d:%d], v3, s[28:31], %s offen" % (reg(u), reg(u) + 3, so), ("s", r))
            if kind == "D":
                A.e("s_add_u32 s32, s32, s34")
            if u + 7 < 9:
                rd(u + 7)
```

```python
S, D, F = 2048, 576, 4608
WS_BYTES = 268435456
WSTRIDE = 492 * 1024
OFF_W   = 0x0000000
SZ_W    = 32 * WSTRIDE
SZ_ACT  = S * D * 2
OFF_XN  = 0x1800000
SZ_XN   = SZ_ACT
OFF_HX  = 0x2000000
SZ_HX   = S * F * 2
OFF_P   = 0x4000000
SZ_P    = 8 * SZ_ACT
OFF_FL  = 0x5800000
SZ_FL   = 0x8000
OFF_X1  = 0x5900000
OFF_Y   = 0x5C00000
OFF_U   = 0x6000000
OFF_TS  = 0x8000000
KA = 8
A_Q, A_K, A_V, A_SK, A_H, A_D, A_BX, A_WG, A_WU, A_WD, A_OUT, A_DBG, A_WS = [8 * i for i in range(13)]
```

```python
from asmlib import *
from layout import *

def gen_row(A, name, mode):
    kernel_begin(A, name)
    Lend = A.newlabel("RWEND")
    A.e("s_cmp_ge_u32 s2, 256")
    A.e("s_cbranch_scc1 %s" % Lend)
    A.e("s_load_dwordx2 s[4:5], s[0:1], %d" % A_WS)
    if mode == 0:
        A.e("s_load_dwordx2 s[6:7], s[0:1], %d" % A_Q)
    if mode == 2:
        A.e("s_load_dwordx2 s[6:7], s[0:1], %d" % A_OUT)
    A.e("v_lshrrev_b32 v1, 5, v0")
    A.e("v_bfe_u32 v2, v0, 3, 2")
    A.e("v_and_b32 v3, 7, v0")
    A.e("v_lshlrev_b32 v4, 12, v1")
    A.e("v_lshl_add_u32 v4, v2, 8, v4")
    A.e("v_lshl_add_u32 v4, v3, 4, v4")
    A.e("s_lshr_b32 s8, s2, 3")
    A.e("s_mul_i32 s8, s8, 73728")
    A.e("s_bfe_u32 s9, s2, 0x20001")
    A.e("s_lshl_b32 s9, s9, 10")
    A.e("s_add_u32 s8, s8, s9")
    A.e("s_and_b32 s9, s2, 1")
    A.e("s_lshl_b32 s9, s9, 7")
    A.e("s_add_u32 s8, s8, s9")
    A.e("v_add_u32 v4, s8, v4")
    A.e("s_lshl_b32 s10, s2, 3")
    if mode != 1:
        A.e("v_add_u32 v5, s10, v3")
        A.e("v_mul_u32_u24 v5, 1152, v5")
        A.e("v_lshl_add_u32 v5, v1, 6, v5")
        A.e("v_lshl_add_u32 v5, v2, 4, v5")
    if mode != 2:
        A.e("v_lshlrev_b32 v6, 17, v1")
        A.e("v_lshl_add_u32 v6, v2, 15, v6")
        A.e("v_add_u32 v7, s10, v3")
        A.e("v_lshl_add_u32 v6, v7, 3, v6")
        A.e("s_movk_i32 s11, 16384")
    A.e("s_waitcnt lgkmcnt(0)")
    srd(A, 12, 4, SZ_ACT, OFF_X1)
    if mode != 1:
        srd(A, 16, 6, SZ_ACT)
    if mode != 0:
        srd(A, 20, 4, SZ_P, OFF_P)
    if mode != 2:
        srd(A, 24, 4, SZ_ACT, OFF_Y)
        srd(A, 28, 4, SZ_ACT, OFF_XN)
        srd(A, 32, 4, SZ_FL, OFF_FL)
    vX, vYr, vP = 8, 12, 16
    if mode != 0:
        for p in range(8):
            A.e("s_mov_b32 s36, %d" % (p * SZ_ACT))
            A.vmem("buffer_load_dwordx4 v[%d:%d], v4, s[20:23], s36 offen" % (vP + 4 * p, vP + 4 * p + 3), ("P", p))
        A.vmem("buffer_load_dwordx4 v[8:11], v4, s[12:15], 0 offen", ("x",))
    else:
        A.vmem("buffer_load_dwordx4 v[8:11], v5, s[16:19], 0 offen", ("x",))
    if mode != 2:
        A.vmem("buffer_load_dwordx2 v[12:13], v6, s[24:27], 0 offen", ("y",))
        A.vmem("buffer_load_dwordx2 v[14:15], v6, s[24:27], s11 offen", ("y",))
        A.e("v_mov_b32 v48, 0")
        A.e("v_lshrrev_b32 v49, 3, v0")
        A.e("v_lshlrev_b32 v49, 20, v49")
        A.e("v_lshl_add_u32 v49, v3, 2, v49")
        A.e("s_lshl_b32 s36, s2, 5")
        A.vmem("buffer_store_dword v48, v49, s[32:35], s36 offen", ("z",))
    X = 52
    T = 60
    def unpack(dst, src):
        for i in range(4):
            A.e("v_lshlrev_b32 v%d, 16, v%d" % (dst + 2 * i, src + i))
            A.e("v_and_b32 v%d, 0xffff0000, v%d" % (dst + 2 * i + 1, src + i))
    def pack(dst, src):
        for i in range(4):
            A.e("v_cvt_pk_bf16_f32 v%d, v%d, v%d" % (dst + i, src + 2 * i, src + 2 * i + 1))
    def rnd8(r, tmp):
        pack(tmp, r); unpack(r, tmp)
    def rnd1(r):
        A.e("v_cvt_pk_bf16_f32 v%d, v%d, v%d" % (r, r, r))
        A.e("v_lshlrev_b32 v%d, 16, v%d" % (r, r))
    if mode != 0:
        A.wait_vm(("P", 0))
        unpack(T, vP)
        for p in range(1, 8):
            A.wait_vm(("P", p))
            unpack(T + 8, vP + 4 * p)
            for i in range(8):
                A.e("v_add_f32 v%d, v%d, v%d" % (T + i, T + i, T + 8 + i))
        rnd8(T, T + 8)
        A.wait_vm(("x",))
        unpack(X, vX)
        for i in range(8):
            A.e("v_add_f32 v%d, v%d, v%d" % (X + i, X + i, T + i))
        if mode == 2:
            pack(T, X)
            A.e("buffer_store_dwordx4 v[%d:%d], v5, s[16:19], 0 offen" % (T, T + 3))
            A.label(Lend)
            A.e("s_endpgm")
            return descriptor(name, 80, 80, sgpr=40)
        rnd8(X, T)
    else:
        A.wait_vm(("x",))
        unpack(X, vX)
    A.e("v_lshrrev_b32 v50, 6, v0")
    A.e("v_mul_u32_u24 v51, 48, v3")
    A.e("v_lshl_add_u32 v50, v50, 2, v51")
    rnd_i = [0]
    def rowsum(r):
        o = rnd_i[0] * 384; rnd_i[0] += 1
        t = T + 16
        A.e("s_nop 1")
        A.e("v_add_f32_dpp v%d, v%d, v%d row_ror:8 row_mask:0xf bank_mask:0xf" % (r, r, r))
        A.e("v_mov_b32 v%d, v%d" % (t, r))
        A.e("s_nop 1")
        A.e("v_permlane16_swap_b32 v%d, v%d" % (r, t))
        A.e("v_add_f32 v%d, v%d, v%d" % (r, r, t))
        A.e("v_mov_b32 v%d, v%d" % (t, r))
        A.e("s_nop 1")
        A.e("v_permlane32_swap_b32 v%d, v%d" % (r, t))
        A.e("v_add_f32 v%d, v%d, v%d" % (r, r, t))
        A.e("ds_write_b32 v50, v%d offset:%d" % (r, o))
        A.e("s_waitcnt lgkmcnt(0)")
        A.e("s_barrier")
        A.e("ds_read_b128 v[%d:%d], v51 offset:%d" % (t, t + 3, o))
        A.e("ds_read_b128 v[%d:%d], v51 offset:%d" % (t + 4, t + 7, o + 16))
        A.e("ds_read_b32 v%d, v51 offset:%d" % (r, o + 32))
        A.e("s_waitcnt lgkmcnt(0)")
        A.e("v_add_f32 v%d, v%d, v%d" % (t, t, t + 1))
        A.e("v_add_f32 v%d, v%d, v%d" % (t + 2, t + 2, t + 3))
        A.e("v_add_f32 v%d, v%d, v%d" % (t + 4, t + 4, t + 5))
        A.e("v_add_f32 v%d, v%d, v%d" % (t + 6, t + 6, t + 7))
        A.e("v_add_f32 v%d, v%d, v%d" % (t, t, t + 2))
        A.e("v_add_f32 v%d, v%d, v%d" % (t + 4, t + 4, t + 6))
        A.e("v_add_f32 v%d, v%d, v%d" % (r, r, t))
        A.e("v_add_f32 v%d, v%d, v%d" % (r, r, t + 4))
        A.e("v_mul_f32 v%d, 0x3ae38e39, v%d" % (r, r))
    M, V = 48, 49
    def layernorm(dst):
        A.e("v_add_f32 v%d, v%d, v%d" % (M, X, X + 1))
        A.e("v_add_f32 v%d, v%d, v%d" % (T, X + 2, X + 3))
        A.e("v_add_f32 v%d, v%d, v%d" % (T + 1, X + 4, X + 5))
        A.e("v_add_f32 v%d, v%d, v%d" % (T + 2, X + 6, X + 7))
        A.e("v_add_f32 v%d, v%d, v%d" % (M, M, T))
        A.e("v_add_f32 v%d, v%d, v%d" % (T + 1, T + 1, T + 2))
        A.e("v_add_f32 v%d, v%d, v%d" % (M, M, T + 1))
        rowsum(M)
        for i in range(8):
            A.e("v_sub_f32 v%d, v%d, v%d" % (T + i, X + i, M))
        A.e("v_mul_f32 v%d, v%d, v%d" % (V, T, T))
        for i in range(1, 8):
            A.e("v_fmac_f32 v%d, v%d, v%d" % (V, T + i, T + i))
        rnd1(M)
        for i in range(8):
            A.e("v_sub_f32 v%d, v%d, v%d" % (T + i, X + i, M))
        rnd8(T, T + 8)
        rowsum(V)
        rnd1(V)
        A.e("v_add_f32 v%d, 0x3727c5ac, v%d" % (V, V))
        rnd1(V)
        A.e("v_sqrt_f32 v%d, v%d" % (V, V))
        A.e("s_nop 0")
        rnd1(V)
        A.e("v_rcp_f32 v%d, v%d" % (V, V))
        A.e("s_nop 0")
        for i in range(8):
            A.e("v_mul_f32 v%d, v%d, v%d" % (T + i, T + i, V))
        pack(dst, T)
    layernorm(T + 8)
    unpack(T, T + 8)
    A.wait_vm(("y",))
    unpack(T + 8, vYr)
    for i in range(8):
        A.e("v_mul_f32 v%d, v%d, v%d" % (T + i, T + i, T + 8 + i))
    rnd8(T, T + 8)
    for i in range(8):
        A.e("v_add_f32 v%d, v%d, v%d" % (X + i, X + i, T + i))
    pack(16, X)
    A.e("buffer_store_dwordx4 v[16:19], v4, s[12:15], 0 offen")
    unpack(X, 16)
    layernorm(20)
    A.e("buffer_store_dwordx4 v[20:23], v4, s[28:31], 0 offen")
    A.label(Lend)
    A.e("s_endpgm")
    return descriptor(name, 88, 88, sgpr=40)
```

```python
import sys, json
sys.path.insert(0, "gen")
from asmlib import *
from front import *
from rows import gen_row
from ffn import gen_ffn
out = sys.argv[1]
opt = json.loads(sys.argv[2]) if len(sys.argv) > 2 else {}
hdr = open("interleave_layers__ssm_conv_h3__glu_gated_reglu__prompt.s.ref").read().split("\n")
A = Asm()
for l in hdr[:15]:
    A.raw(l)
L = [("kv_kernel", 432, 256, 36864), ("conv_kernel", 240, 256, CONV_LDS), ("row0_kernel", 256, 576, 2048), ("ffn_kernel", 256, 256, 147456),
     ("row1_kernel", 256, 576, 2048), ("ffn_kernel", 256, 256, 147456), ("row2_kernel", 256, 576, 0)]
L = L[:opt.get("n", len(L))]
for k, g, b, lds in L:
    A.raw("; @launch kernel=%s grid=(%d,1,1) block=(%d,1,1) lds=%d" % (k, g, b, lds))
A.raw('.amdgcn_target "amdgcn-amd-amdhsa--gfx950"')
A.raw(".text")
d = gen_kv(A) + gen_conv(A) + gen_row(A, "row0_kernel", 0) + gen_row(A, "row1_kernel", 1) + gen_row(A, "row2_kernel", 2) + gen_ffn(A, opt=opt)
A.raw('.section .rodata,"a"')
A.raw(d)
open(out, "w").write(A.text())
```

```python
class Asm:
    def __init__(self):
        self.lines = []
        self.vm = []
        self.lg = []
        self.lbl = 0
        self.issued = {}
    def e(self, s):
        self.lines.append("    " + s)
    def raw(self, s):
        self.lines.append(s)
    def label(self, name):
        self.lines.append(name + ":")
    def newlabel(self, p="L"):
        self.lbl += 1
        return "%s_%d" % (p, self.lbl)
    def c(self, s):
        self.lines.append("    ; " + s)
    def vmem(self, s, tag=None):
        if tag is not None and tag[0] in getattr(self, "skip", ()):
            self.issued[tag] = self.issued.get(tag, 0) + 1
            return
        self.e(s)
        self.vm.append(tag)
        self.issued[tag] = self.issued.get(tag, 0) + 1
        assert len(self.vm) <= 63, "vmcnt overflow"
    def lds(self, s, tag=None):
        self.e(s)
        self.lg.append(tag)
        self.issued[tag] = self.issued.get(tag, 0) + 1
        assert len(self.lg) <= 15, "lgkmcnt overflow"
    def must(self, tag, n=1):
        assert self.issued.get(tag, 0) == n, "op %r issued %d times, want %d" % (tag, self.issued.get(tag, 0), n)
    def _need(self, q, tags):
        last = -1
        for i, t in enumerate(q):
            if t in tags:
                last = i
        return last
    def wait_vm(self, *tags):
        last = self._need(self.vm, tags)
        if last < 0:
            return
        n = len(self.vm) - 1 - last
        self.e("s_waitcnt vmcnt(%d)" % n)
        self.vm = self.vm[last + 1:]
    def wait_lg(self, *tags):
        last = self._need(self.lg, tags)
        if last < 0:
            return
        n = len(self.lg) - 1 - last
        self.e("s_waitcnt lgkmcnt(%d)" % n)
        self.lg = self.lg[last + 1:]
    def wait_vm0(self):
        self.e("s_waitcnt vmcnt(0)")
        self.vm = []
    def wait_lg0(self):
        self.e("s_waitcnt lgkmcnt(0)")
        self.lg = []
    prof = False
    def stamp(self, k, drain=False):
        if not self.prof:
            return
        if drain:
            self.wait_vm0()
        self.e("s_memrealtime s[%d:%d]" % (72 + 2 * k, 73 + 2 * k))
        if k == 0:
            self.e("s_load_dwordx2 s[70:71], s[0:1], 96")
            self.e("s_mov_b32 s69, s2")
            for q in range(1, 8):
                self.e("s_mov_b32 s%d, 0" % (72 + 2 * q))
        self.wait_lg0()
    def stamp_end(self, kidx, k=7):
        if not self.prof:
            return
        self.stamp(k, drain=True)
        self.e("s_add_u32 s88, s70, 0x%x" % (0x8000000 + kidx * 0x10000))
        self.e("s_addc_u32 s89, s71, 0")
        self.e("s_mov_b32 s90, 0x10000")
        self.e("s_mov_b32 s91, 0x20000")
        self.e("s_lshl_b32 s92, s69, 5")
        self.e("v_lshlrev_b32 v1, 14, v0")
        self.e("v_and_b32 v1, 0xfff00000, v1")
        for q in range(8):
            self.e("v_mov_b32 v2, s%d" % (72 + 2 * q))
            self.e("buffer_store_dword v2, v1, s[88:91], s92 offen offset:%d" % (4 * q))
    def text(self):
        return "\n".join(self.lines) + "\n"

def v(i, n=1):
    return "v%d" % i if n == 1 else "v[%d:%d]" % (i, i + n - 1)
def a(i, n=1):
    return "a%d" % i if n == 1 else "a[%d:%d]" % (i, i + n - 1)
def s(i, n=1):
    return "s%d" % i if n == 1 else "s[%d:%d]" % (i, i + n - 1)

def kernel_begin(A, name):
    A.raw(".globl %s" % name)
    A.raw(".p2align 8")
    A.raw(".type %s,@function" % name)
    A.raw("%s:" % name)
    A.vm = []
    A.lg = []
    A.issued = {}

def descriptor(name, vgpr, accum, sgpr=96, wgy=False):
    if Asm.prof:
        sgpr = 96
    r = [".p2align 6",
         ".amdhsa_kernel %s" % name,
         "  .amdhsa_next_free_vgpr %d" % vgpr,
         "  .amdhsa_next_free_sgpr %d" % sgpr,
         "  .amdhsa_accum_offset %d" % accum,
         "  .amdhsa_group_segment_fixed_size 0",
         "  .amdhsa_kernarg_size 104",
         "  .amdhsa_user_sgpr_count 2",
         "  .amdhsa_user_sgpr_kernarg_segment_ptr 1",
         "  .amdhsa_system_sgpr_workgroup_id_x 1"]
    if wgy:
        r.append("  .amdhsa_system_sgpr_workgroup_id_y 1")
    r += ["  .amdhsa_float_denorm_mode_32 3",
          "  .amdhsa_float_denorm_mode_16_64 3",
          ".end_amdhsa_kernel"]
    return "\n".join(r) + "\n"

def srd(A, d, base, nbytes, off=0):
    if off:
        A.e("s_add_u32 s%d, s%d, 0x%x" % (d, base, off))
        A.e("s_addc_u32 s%d, s%d, 0" % (d + 1, base + 1))
    else:
        A.e("s_mov_b32 s%d, s%d" % (d, base))
        A.e("s_mov_b32 s%d, s%d" % (d + 1, base + 1))
    A.e("s_mov_b32 s%d, 0x%x" % (d + 2, nbytes))
    A.e("s_mov_b32 s%d, 0x20000" % (d + 3))

def code_prefetch(A, start, end, threads, vt, st, idreg="s2", back=False):
    L = A.newlabel("PF")
    A.e("s_getpc_b64 s[%d:%d]" % (st, st + 1))
    A.label(L)
    if back:
        A.e("s_sub_u32 s%d, s%d, %s-%s" % (st, st, L, start))
        A.e("s_subb_u32 s%d, s%d, 0" % (st + 1, st + 1))
    else:
        A.e("s_add_u32 s%d, s%d, %s-%s" % (st, st, start, L))
        A.e("s_addc_u32 s%d, s%d, 0" % (st + 1, st + 1))
    A.e("s_lshr_b32 s%d, %s, 3" % (st + 2, idreg))
    A.e("s_mul_i32 s%d, s%d, %d" % (st + 2, st + 2, threads * 16))
    A.e("v_lshl_add_u32 v%d, v0, 4, s%d" % (vt, st + 2))
    A.e("v_min_u32 v%d, %s-%s-16, v%d" % (vt, end, start, vt))
    A.e("v_mov_b32 v%d, s%d" % (vt + 1, st + 1))
    A.e("v_add_co_u32 v%d, vcc, s%d, v%d" % (vt, st, vt))
    A.e("s_nop 1")
    A.e("v_addc_co_u32 v%d, vcc, 0, v%d, vcc" % (vt + 1, vt + 1))
    A.vmem("global_load_dwordx4 v[%d:%d], v[%d:%d], off" % (vt + 2, vt + 5, vt, vt + 1), ("pf",))
```

```python
from asmlib import *
from layout import *

def g1_steps():
    st = []
    for ks in range(18):
        for u in range(4):
            for m in range(2):
                st.append(("g1", u, m, ks))
    for u in range(4, 9):
        for ks in range(18):
            for m in range(2):
                st.append(("g1", u, m, ks))
    return st
def g2_steps(KA):
    st = []
    for kk in range(KA):
        for i in range(9):
            st.append(("g2", i, 0, kk))
    for i in range(9):
        for kk in range(KA, 18):
            st.append(("g2", i, 0, kk))
    return st

def gen_ffn(A, name="ffn_kernel", stamp=False, opt=None):
    opt = opt or {}
    PD = opt.get("PD", 5); NB = PD + 1
    assert NB <= 6
    kernel_begin(A, name)
    A.skip = opt.get("skip", "")
    Lend = A.newlabel("FFEND")
    sW, sX, sH, sP, sF = 8, 12, 16, 20, 24
    sWoff, sXoff, sHoff, sM0b, sT, sT2, sT3, sPoff, sFoff, sWave, sJq, sHst = 28, 29, 30, 31, 32, 33, 34, 35, 36, 37, 38, 39
    sTmp, sCnt, sTail = 40, 41, 7
    vL16, vL8, vRd, vP16, vP8, vZ, vFv = 1, 2, 3, 4, 5, 6, 7
    vPoll = 8
    vWB = 16
    vAcc = 40
    vU = 184
    vXo = 224
    def opreg(ks, tt, half=None):
        i = ks * 4 + tt
        if i < 64:
            return a(i * 4, 4)
        b = vXo + (i - 64) * 4
        if half is None:
            return v(b, 4)
        return v(b + 2 * half, 2)
    slot = {0: vAcc, 1: vAcc + 32, 2: vAcc + 64, 3: vAcc + 96, 4: vU, 5: vAcc, 6: vAcc + 32, 7: vAcc + 64, 8: vU}
    def acc1(u, m, tt):
        return slot[u] + m * 16 + tt * 4
    def acc2(i, tt):
        return vAcc + i * 16 + tt * 4
    nst = [0]
    def do_stamp():
        if stamp:
            A.e("s_memtime s[%d:%d]" % (48 + 4 * nst[0], 49 + 4 * nst[0]))
            A.e("s_memrealtime s[%d:%d]" % (50 + 4 * nst[0], 51 + 4 * nst[0]))
            A.wait_lg0()
            nst[0] += 1
    A.e("s_cmp_ge_u32 s2, 256")
    A.e("s_cbranch_scc1 %s" % Lend)
    A.stamp(0)
    A.e("s_load_dwordx2 s[4:5], s[0:1], 96")
    do_stamp()
    A.e("s_mov_b32 s6, 0")
    A.e("v_lshrrev_b32 v8, 6, v0")
    A.e("v_and_b32 v9, 63, v0")
    A.e("v_readfirstlane_b32 s%d, v8" % sWave)
    A.e("v_lshlrev_b32 v%d, 4, v9" % vL16)
    A.e("v_lshlrev_b32 v%d, 3, v9" % vL8)
    A.e("v_and_b32 v10, 15, v9")
    A.e("v_lshrrev_b32 v11, 4, v9")
    A.e("v_lshlrev_b32 v10, 4, v10")
    A.e("v_lshrrev_b32 v12, 1, v11")
    A.e("v_lshl_add_u32 v10, v12, 8, v10")
    A.e("v_and_b32 v11, 1, v11")
    A.e("v_lshl_add_u32 v%d, v11, 3, v10" % vP8)
    A.e("v_mov_b32 v%d, 0" % vZ)
    A.e("s_and_b32 s42, s2, 7")
    A.e("s_lshr_b32 s43, s2, 3")
    A.e("s_and_b32 s%d, s43, 3" % sJq)
    A.e("s_lshr_b32 s43, s43, 2")
    A.e("s_lshl_b32 s44, s42, 2")
    A.e("s_add_u32 s44, s44, s%d" % sJq)
    A.e("s_mul_i32 s%d, s44, %d" % (sWoff, WSTRIDE))
    A.e("s_mul_i32 s%d, s%d, 3072" % (sM0b, sWave))
    A.e("s_add_u32 s%d, s%d, s%d" % (sWoff, sWoff, sM0b))
    A.e("s_lshl_b32 s45, s43, 2")
    A.e("s_add_u32 s45, s45, s%d" % sWave)
    A.e("s_mul_i32 s%d, s45, 73728" % sXoff)
    A.e("s_mul_i32 s46, s42, %d" % (32 * 73728))
    A.e("s_add_u32 s%d, s46, s%d" % (sHoff, sXoff))
    A.e("s_lshl_b32 s47, s%d, 12" % sJq)
    A.e("s_add_u32 s%d, s%d, s47" % (sHst, sHoff))
    A.e("s_lshl_b32 s47, s%d, 14" % sJq)
    A.e("s_add_u32 s%d, s%d, s47" % (sPoff, sHoff))
    A.e("s_lshr_b32 s46, s%d, 1" % sJq)
    A.e("s_lshl_b32 s46, s46, 12")
    A.e("s_and_b32 s47, s%d, 1" % sJq)
    A.e("s_lshl_b32 s47, s47, 9")
    A.e("s_add_u32 s46, s46, s47")
    A.e("s_add_u32 s46, s46, 65536")
    A.e("s_add_u32 s%d, s46, s%d" % (sTail, sHoff))
    A.e("s_lshl_b32 s47, s43, 3")
    A.e("s_add_u32 s47, s47, s42")
    A.e("s_lshl_b32 s%d, s47, 7" % sFoff)
    A.e("s_waitcnt lgkmcnt(0)")
    srd(A, sW, 4, SZ_W, OFF_W)
    srd(A, sX, 4, SZ_XN, OFF_XN)
    srd(A, sH, 4, SZ_HX, OFF_HX)
    srd(A, sP, 4, SZ_P, OFF_P)
    srd(A, sF, 4, SZ_FL, OFF_FL)

    steps = g1_steps() + g2_steps(KA)
    NS = len(steps)
    bars = opt.get("bars") or (list(range(12)) + [12, 14, 16, 18, 20, 21, 22, 23, 24, 25, 26, 27, 28, 29, 30, 31, 32, 33, 34, 35, 37, 39])
    def bar_cover(x):
        i = bars.index(x)
        nx = bars[i + 1] if i + 1 < len(bars) else 41
        return list(range(x, nx))
    def dma_ops(c):
        ops = []
        def f0(c=c):
            A.e("s_add_u32 m0, s%d, %d" % (sM0b, (c % 12) * 12288))
            A.e("s_add_u32 s%d, s%d, %d" % (sT, sWoff, c * 12288))
            A.vmem("buffer_load_dwordx4 v%d, s[%d:%d], s%d offen lds" % (vL16, sW, sW + 3, sT), ("W", c))
        ops.append(f0)
        for q in (1, 2):
            ops.append(lambda q=q, c=c: A.vmem("buffer_load_dwordx4 v%d, s[%d:%d], s%d offen offset:%d lds"
                                                % (vL16, sW, sW + 3, sT, q * 1024), ("W", c)))
        return ops
    def x_ops(ks):
        ops = []
        for tt in range(4):
            def f(ks=ks, tt=tt):
                if tt == 0:
                    A.e("s_add_u32 s%d, s%d, %d" % (sT2, sXoff, ks * 4096))
                A.vmem("buffer_load_dwordx4 %s, v%d, s[%d:%d], s%d offen offset:%d"
                       % (opreg(ks, tt), vL16, sX, sX + 3, sT2, tt * 1024), ("X", ks, tt))
            ops.append(f)
        return ops
    def h_ops(kk):
        ops = []
        for tt in range(4):
            if kk < 16:
                def f(kk=kk, tt=tt):
                    if tt == 0:
                        A.e("s_add_u32 s%d, s%d, %d" % (sT2, sHoff, kk * 4096))
                    A.vmem("buffer_load_dwordx4 %s, v%d, s[%d:%d], s%d offen offset:%d sc1"
                           % (opreg(kk, tt), vL16, sH, sH + 3, sT2, tt * 1024), ("H", kk, tt))
                ops.append(f)
            else:
                for hf in range(2):
                    def f(kk=kk, tt=tt, hf=hf):
                        if tt == 0 and hf == 0:
                            A.e("s_add_u32 s%d, s%d, %d" % (sT2, sHoff, kk * 4096))
                        A.vmem("buffer_load_dwordx2 %s, v%d, s[%d:%d], s%d offen offset:%d sc1"
                               % (opreg(kk, tt, hf), vL8, sH, sH + 3, sT2, tt * 1024 + hf * 512), ("H", kk, tt))
                    ops.append(f)
        return ops
    def epi1_ops(u):
        ops = []
        ue = u & ~1
        for tt in range(4):
            g = acc1(u, 0, tt); up = acc1(u, 1, tt); q = acc1(ue, 1, tt) + 2 * (u & 1)
            for r in range(4):
                ops.append(lambda g=g, r=r: A.e("v_max_f32 v%d, 0, v%d" % (g + r, g + r)))
            for r in range(4):
                ops.append(lambda g=g, up=up, r=r: A.e("v_mul_f32 v%d, v%d, v%d" % (g + r, g + r, up + r)))
            for p in range(2):
                ops.append(lambda g=g, q=q, p=p: A.e("v_cvt_pk_bf16_f32 v%d, v%d, v%d" % (q + p, g + 2 * p, g + 2 * p + 1)))
            if u & 1:
                def st(u=u, tt=tt, ue=ue):
                    if tt == 0:
                        A.e("s_add_u32 s%d, s%d, %d" % (sT3, sHst, (u // 2) * 16384))
                    qq = acc1(ue, 1, tt)
                    A.vmem("buffer_store_dwordx4 v[%d:%d], v%d, s[%d:%d], s%d offen offset:%d sc1"
                           % (qq, qq + 3, vL16, sH, sH + 3, sT3, tt * 1024), ("S", u))
                ops.append(st)
            elif u == 8:
                def st(tt=tt):
                    qq = acc1(8, 1, tt)
                    A.vmem("buffer_store_dwordx2 v[%d:%d], v%d, s[%d:%d], s%d offen offset:%d sc1"
                           % (qq, qq + 1, vL8, sH, sH + 3, sTail, tt * 1024), ("S", 8))
                ops.append(st)
        return ops
    pfl = opt.get("pflags", "sc1")
    def epi2_ops(i):
        ops = []
        ie = i & ~1
        for tt in range(4):
            ac = acc2(i, tt); q = acc2(ie, tt) + 2 * (i & 1)
            for p in range(2):
                ops.append(lambda ac=ac, q=q, p=p: A.e("v_cvt_pk_bf16_f32 v%d, v%d, v%d" % (q + p, ac + 2 * p, ac + 2 * p + 1)))
            if i & 1:
                def st(i=i, tt=tt, ie=ie):
                    if tt == 0:
                        A.e("s_add_u32 s%d, s%d, %d" % (sT3, sPoff, (i // 2) * 4096))
                    qq = acc2(ie, tt)
                    A.vmem("buffer_store_dwordx4 v[%d:%d], v%d, s[%d:%d], s%d offen offset:%d %s"
                           % (qq, qq + 3, vL16, sP, sP + 3, sT3, tt * 1024, pfl), ("P", i))
                ops.append(st)
            elif i == 8:
                def st(tt=tt):
                    qq = acc2(8, tt)
                    A.vmem("buffer_store_dwordx2 v[%d:%d], v%d, s[%d:%d], s%d offen offset:%d %s"
                           % (qq, qq + 1, vP8, sP, sP + 3, sTail, tt * 1024, pfl), ("P", 8))
                ops.append(st)
        return ops
    def flag_store(val):
        L = A.newlabel("FS")
        A.e("v_mov_b32 v%d, %d" % (vFv, val))
        A.e("s_lshl_b32 s%d, s%d, 2" % (sTmp, sJq))
        A.e("s_add_u32 s%d, s%d, s%d" % (sTmp, sTmp, sFoff))
        A.e("s_lshl_b32 s%d, s%d, 20" % (sCnt, sWave))
        A.e("s_add_u32 s%d, s%d, s%d" % (sTmp, sTmp, sCnt))
        A.vmem("buffer_store_dword v%d, v%d, s[%d:%d], s%d offen sc1" % (vFv, vZ, sF, sF + 3, sTmp), ("F", val))
    def poll_issue(val):
        A.vmem("buffer_load_dwordx4 v[%d:%d], v%d, s[%d:%d], s%d offen sc1" % (vPoll, vPoll + 3, vZ, sF, sF + 3, sFoff), ("Q", val))
    slow = []
    def poll_check(val):
        A.wait_vm(("Q", val))
        Lok = A.newlabel("PK"); Lsl = A.newlabel("PS")
        A.e("v_min_u32 v%d, v%d, v%d" % (vPoll, vPoll, vPoll + 1))
        A.e("v_min3_u32 v%d, v%d, v%d, v%d" % (vPoll, vPoll, vPoll + 2, vPoll + 3))
        A.e("s_nop 0")
        A.e("v_readfirstlane_b32 s%d, v%d" % (sTmp, vPoll))
        A.e("s_cmp_lt_u32 s%d, %d" % (sTmp, val))
        A.e("s_cbranch_scc1 %s" % Lsl)
        A.label(Lok)
        slow.append((Lsl, Lok, val))

    LAT = opt.get("LAT", 16)
    GAP = opt.get("GAP", 5)
    PRO = opt.get("PRO", 16)
    P1i, P1c = opt.get("P1", (274, 286))
    P2i, P2c = opt.get("P2", (338, 348))
    P3i, P3c = opt.get("P3", (374, 384))
    barstep = {c: 12 * c - PD for c in bars}
    def bar_of(c):
        return max(b for b in bars if b <= c)
    Q = {"W": [], "X": [], "S": []}
    for c in range(41):
        e = -1 if c < 12 else barstep[min(b for b in bars if b >= c - 10)] + 0.3
        dl = barstep[bar_of(c)]
        Q["W"] += [[e, dl, op] for op in dma_ops(c)]
    for ks in range(18):
        Q["X"] += [[-1, 8 * ks, op] for op in x_ops(ks)]
    def hneed(kk):
        return 324 + 9 * kk if kk < KA else 324 + 9 * KA + (kk - KA)
    for kk in range(18):
        e = 288 + 2 * kk + 2 if kk < 12 else (P2c if kk < 16 else P3c)
        Q["X"] += [[e, hneed(kk) - opt.get("HEARLY", 10), op] for op in h_ops(kk)]
    ev = {}
    def at(i, f):
        ev.setdefault(i, []).append(f)
    at(P1i, lambda: poll_issue(1)); at(P1c, lambda: poll_check(1))
    at(P2i, lambda: poll_issue(2)); at(P2c, lambda: poll_check(2))
    at(P3i, lambda: poll_issue(3)); at(P3c, lambda: poll_check(3))
    pub = {21: (1, [("S", 1), ("S", 3), ("S", 5)]), 27: (2, [("S", 7)]), 30: (3, [("S", 8)])}
    eq = []
    def pick(now):
        best = None
        for k, q in Q.items():
            if q and q[0][0] <= now and (best is None or q[0][1] < Q[best][0][1]):
                best = k
        return best
    for _ in range(PRO):
        Q[pick(-1)].pop(0)[2]()
    def issue_read(i):
        if i >= NS:
            return
        c = i // 12
        if i % 12 == 0 and c in bars:
            tags = [("W", x) for x in bar_cover(c)]
            for tg in tags:
                while A.issued.get(tg, 0) < 3:
                    print("late W", tg, "at step", i)
                    Q["W"].pop(0)[2]()
            if c in pub:
                for tg in pub[c][1]:
                    A.must(tg, 4)
                tags += pub[c][1]
            A.wait_vm(*tags)
            if not opt.get("nobar"):
                A.e("s_barrier")
            if c in pub:
                flag_store(pub[c][0])
        if i % 36 == 0:
            A.e("v_add_u32 v%d, %d, v%d" % (vRd, ((i // 36) % 4) * 36864, vL16))
        A.lds("ds_read_b128 v[%d:%d], v%d offset:%d" % (vWB + (i % NB) * 4, vWB + (i % NB) * 4 + 3, vRd, (i % 36) * 1024), ("R", i))
    for i in range(PD):
        issue_read(i)
    last = -100
    log = []
    for i, (kind, u, m, ks) in enumerate(steps):
        if stamp and i in (144, 324, 324 + 9 * KA):
            do_stamp()
        if i in (1, 144, 324, 324 + 9 * KA):
            A.stamp(1 + (1, 144, 324, 324 + 9 * KA).index(i))
        for f in ev.get(i, []):
            f()
        wb = v(vWB + (i % NB) * 4, 4)
        if ks == 0:
            pend = set(e[2] for e in eq) | set(e[3] for e in Q["S"])
            if kind == "g1":
                bad = [("S", o | 1) for o in range(u) if slot[o] == slot[u]] + [("S", o) for o in range(u) if slot[o] == slot[u]]
            else:
                bad = [("S", o) for o in range(8)]
            assert not (pend & set(bad)), (i, pend)
        A.wait_lg(("R", i))
        for tt in range(4):
            tg = ("X" if kind == "g1" else "H", ks, tt)
            while A.issued.get(tg, 0) < (2 if (kind == "g2" and ks >= 16) else 1):
                assert Q["X"][0][0] <= i
                print("late", tg, "at step", i)
                Q["X"].pop(0)[2]()
            A.wait_vm(tg)
            ac = v(acc1(u, m, tt) if kind == "g1" else acc2(u, tt), 4)
            A.e("v_mfma_f32_16x16x32_bf16 %s, %s, %s, %s" % (ac, wb, opreg(ks, tt), "0" if ks == 0 else ac))
            now = i + tt / 4.0
            slotn = 4 * i + tt
            did = 0
            if tt == 0:
                issue_read(i + PD)
                did = 1
            if slotn - last >= GAP and len(A.vm) < 60:
                k = pick(now)
                if k is not None:
                    ent = Q[k].pop(0)
                    ent[2]()
                    log.append((now, k, ent[1]))
                    last = slotn - (2 if "dwordx2" in A.lines[-1] else 0)
                    did += 1
            for _ in range(2 - did):
                if eq and eq[0][0] <= i:
                    e = eq.pop(0)
                    if e[3]:
                        Q["S"].append([now, now + opt.get("SDL", -100), e[1], e[2]])
                    else:
                        e[1]()
        if kind == "g1" and ks == 17 and m == 1:
            start = max(i + 3, 144 + 2)
            eq += [(start, op, ("S", u), op.__name__ == "st") for op in epi1_ops(u)]
        if kind == "g2" and ks == 17:
            eq += [(i + 3, op, ("P", u), op.__name__ == "st") for op in epi2_ops(u)]
    assert not Q["W"] and not Q["X"]
    if opt.get("log"):
        for l in log: print(l)
    for e in Q["S"]:
        e[2]()
    A.e("s_nop 7")
    for e in eq:
        e[1]()
    A.stamp(5)
    A.stamp_end(5)
    if stamp:
        do_stamp()
        A.wait_vm0()
        do_stamp()
        srd(A, 44, 4, 0x100000, OFF_TS)
        A.e("s_lshl_b32 s40, s2, 2")
        A.e("s_add_u32 s40, s40, s%d" % sWave)
        A.e("s_lshl_b32 s40, s40, 6")
        for k in range(nst[0]):
            A.e("v_mov_b32 v8, s%d" % (48 + 4 * k))
            A.e("v_mov_b32 v9, s%d" % (50 + 4 * k))
            A.e("buffer_store_dwordx2 v[8:9], v%d, s[44:47], s40 offen offset:%d" % (vZ, k * 8))
            A.e("s_nop 4")
        A.e("v_mov_b32 v8, s6")
        A.e("buffer_store_dword v8, v%d, s[44:47], s40 offen offset:56" % vZ)
    A.label(Lend)
    A.e("s_endpgm")
    for Lsl, Lok, val in slow:
        A.label(Lsl)
        if stamp:
            A.e("s_add_u32 s6, s6, %d" % (1 << (10 * (val - 1))))
        A.e("s_mov_b32 s%d, 0x200000" % sCnt)
        Lp = A.newlabel("PL")
        A.label(Lp)
        A.e("buffer_load_dwordx4 v[%d:%d], v%d, s[%d:%d], s%d offen sc1" % (vPoll, vPoll + 3, vZ, sF, sF + 3, sFoff))
        A.e("s_waitcnt vmcnt(0)")
        A.e("v_min_u32 v%d, v%d, v%d" % (vPoll, vPoll, vPoll + 1))
        A.e("v_min3_u32 v%d, v%d, v%d, v%d" % (vPoll, vPoll, vPoll + 2, vPoll + 3))
        A.e("s_nop 0")
        A.e("v_readfirstlane_b32 s%d, v%d" % (sTmp, vPoll))
        A.e("s_cmp_ge_u32 s%d, %d" % (sTmp, val))
        A.e("s_cbranch_scc1 %s" % Lok)
        if stamp:
            A.e("s_add_u32 s6, s6, %d" % (1 << (10 * (val - 1))))
        A.e("s_sub_u32 s%d, s%d, 1" % (sCnt, sCnt))
        A.e("s_cmp_lg_u32 s%d, 0" % sCnt)
        A.e("s_cbranch_scc1 %s" % Lp)
        A.e("s_branch %s" % Lok)
    return descriptor(name, 512, 256)
```

```python
from asmlib import *
from layout import *
from ffn import g1_steps, g2_steps

FL_KV, FL_Y, FL_W, FL_XN, FL_P, FL_H = [OFF_FL + o for o in (0x0000, 0x0800, 0x1000, 0x2000, 0x3000, 0x4000)]
TSZ = 1036 * 16
LSZ = 2 * TSZ
USZ = 79 * 96
LDS_BYTES = 163840
L_RED = 147456
L_X1 = 147456 + 1024

sWave, sNonce, sLay, sWS = 3, 6, 7, 8
VST = 223

class G:
    def __init__(self, A, opt):
        self.A = A; self.opt = opt; self.prof = opt.get("prof"); self.slow = []
    def stamp(self, k):
        if not self.prof: return
        A = self.A
        A.e("s_memrealtime s[68:69]")
        A.e("s_mov_b32 s70, m0")
        A.e("s_lshr_b32 m0, s%d, 6" % sLay)
        A.e("s_add_u32 m0, m0, %d" % k)
        A.wait_lg0()
        A.e("v_writelane_b32 v%d, s68, m0" % VST)
        A.e("s_mov_b32 m0, s70")
    def stamp_end(self):
        if not self.prof: return
        A = self.A
        A.wait_vm0()
        self.stamp(15)
        A.e("v_and_b32 v1, 63, v0")
        A.e("v_lshlrev_b32 v1, 2, v1")
        A.e("s_lshl_b32 s68, s2, 8")
        A.e("s_lshl_b32 s69, s%d, 28" % sWave)
        A.e("s_add_u32 s68, s68, s69")
        A.e("s_add_u32 s68, s68, 0x%x" % OFF_TS)
        A.e("buffer_store_dword v%d, v1, s[8:11], s68 offen" % VST)
    def publish(self, soff, vz, vt, st):
        A = self.A
        A.e("v_mov_b32 v%d, s%d" % (vt, sNonce))
        A.e("s_lshl_b32 s%d, s%d, 28" % (st, sWave))
        A.e("s_add_u32 s%d, s%d, s%d" % (st, st, soff))
        A.e("s_waitcnt vmcnt(0) lgkmcnt(0)")
        A.vm = []; A.lg = []
        A.e("s_barrier")
        A.vmem("buffer_store_dword v%d, v%d, s[8:11], s%d offen sc1" % (vt, vz, st), ("flag",))
    def spin(self, soff, voff, vt, st, n=1):
        A = self.A
        L = A.newlabel("SP"); Lo = A.newlabel("SO")
        A.e("s_mov_b32 s%d, 0x20000" % st)
        A.label(L)
        A.e("buffer_load_dword%s %s, v%d, s[8:11], s%d offen sc1" % ("" if n == 1 else "x%d" % n, v(vt, n), voff, soff))
        A.e("s_sub_u32 s%d, s%d, 1" % (st, st))
        A.e("s_waitcnt vmcnt(0)")
        for i in range(n):
            A.e("v_xor_b32 v%d, s%d, v%d" % (vt + i, sNonce, vt + i))
        for i in range(1, n):
            A.e("v_or_b32 v%d, v%d, v%d" % (vt, vt, vt + i))
        A.e("v_cmp_ne_u32 vcc, 0, v%d" % vt)
        A.e("s_cmp_eq_u32 s%d, 0" % st)
        A.e("s_cbranch_scc1 %s" % Lo)
        A.e("s_cbranch_vccnz %s" % L)
        A.label(Lo)
        A.vm = []

def get_nonce(g, vz, vt, st):
    A = g.A
    L = A.newlabel("NC"); Lo = A.newlabel("NO")
    A.e("s_mov_b32 s%d, 0x20000" % st)
    A.label(L)
    A.e("buffer_load_dword v%d, v%d, s[12:15], 0 offen sc1" % (vt, vz))
    A.e("s_sub_u32 s%d, s%d, 1" % (st, st))
    A.e("s_waitcnt vmcnt(0)")
    A.e("v_readfirstlane_b32 s%d, v%d" % (sNonce, vt))
    A.e("s_cmp_eq_u32 s%d, 0" % st)
    A.e("s_cbranch_scc1 %s" % Lo)
    A.e("s_cmp_eq_u32 s%d, 0" % sNonce)
    A.e("s_cbranch_scc1 %s" % L)
    A.label(Lo)
    A.vm = []

vT, vT2, vR, vR2, vY, vY2 = 8, 9, 10, 11, 12, 13
vQ = 240

def row_addrs(A):
    A.e("v_and_b32 v16, 7, v0")
    A.e("v_bfe_u32 v17, v0, 3, 2")
    A.e("v_bfe_u32 v18, v0, 5, 1")
    A.e("v_lshrrev_b32 v19, 6, v0")
    A.e("v_lshl_add_u32 v20, v19, 2, v18")
    A.e("v_lshl_add_u32 v21, v19, 1, v18")
    A.e("v_lshlrev_b32 v%d, 4, v16" % vT)
    A.e("v_lshl_add_u32 v%d, v17, 2, v%d" % (vT2, vT))
    A.e("v_lshl_add_u32 v%d, v17, 8, v%d" % (vT, vT))
    A.e("v_lshl_add_u32 v%d, v20, 12, v%d" % (vT, vT))
    A.e("v_and_b32 v22, 3, v21")
    A.e("v_lshl_add_u32 v%d, v22, 8, v%d" % (vT2, vT2))
    A.e("v_lshrrev_b32 v22, 2, v21")
    A.e("v_lshl_add_u32 v%d, v22, 12, v%d" % (vT2, vT2))
    A.e("v_add_u32 v%d, 65536, v%d" % (vT2, vT2))
    A.e("v_mul_u32_u24 v22, 1152, v16")
    A.e("v_lshl_add_u32 v%d, v20, 6, v22" % vR)
    A.e("v_lshl_add_u32 v%d, v17, 4, v%d" % (vR, vR))
    A.e("v_lshl_add_u32 v%d, v21, 4, v22" % vR2)
    A.e("v_lshl_add_u32 v%d, v17, 2, v%d" % (vR2, vR2))
    A.e("v_lshlrev_b32 v22, 3, v16")
    A.e("v_lshl_add_u32 v%d, v20, 17, v22" % vY)
    A.e("v_lshl_add_u32 v%d, v17, 15, v%d" % (vY, vY))
    A.e("v_lshl_add_u32 v%d, v21, 15, v22" % vY2)
    A.e("v_lshrrev_b32 v22, 1, v17")
    A.e("v_lshl_add_u32 v%d, v22, 14, v%d" % (vY2, vY2))
    A.e("v_and_b32 v22, 1, v17")
    A.e("v_lshl_add_u32 v%d, v22, 2, v%d" % (vY2, vY2))
    A.e("v_add_u32 v%d, 0x200000, v%d" % (vY2, vY2))

def q_loads(A):
    A.e("s_mul_i32 s44, s2, 9216")
    A.vmem("buffer_load_dwordx4 v[%d:%d], v%d, s[40:43], s44 offen" % (vQ, vQ + 3, vR), ("q",))
    A.vmem("buffer_load_dwordx4 v[%d:%d], v%d, s[40:43], s44 offen offset:128" % (vQ + 4, vQ + 7, vR), ("q",))
    A.vmem("buffer_load_dword v%d, v%d, s[40:43], s44 offen offset:1024" % (vQ + 8, vR2), ("q",))

def gen_kvconv(g):
    A = g.A
    A.e("s_lshr_b32 s45, s2, 4")
    A.e("s_and_b32 s46, s2, 15")
    A.e("v_and_b32 v2, 63, v0")
    A.e("v_and_b32 v24, 7, v0")
    A.e("v_lshrrev_b32 v25, 3, v0")
    A.e("s_lshl_b32 s47, s46, 7")
    A.e("v_lshl_add_u32 v24, v24, 3, s47")
    A.e("s_lshl_b32 s47, s45, 7")
    A.e("v_lshl_add_u32 v25, v25, 2, s47")
    A.e("s_movk_i32 s47, 1152")
    A.e("v_mad_u32_u24 v26, v24, s47, v25")
    A.e("v_subrev_u32 v27, 4608, v26")
    A.e("v_add_u32 v28, %d, v26" % (60 * 1152))
    A.e("v_lshlrev_b32 v29, 2, v25")
    A.e("v_lshlrev_b32 v30, 12, v25")
    A.e("v_lshlrev_b32 v31, 1, v24")
    A.e("v_sub_u32 v30, v30, v31")
    A.e("v_add_u32 v30, 4080, v30")
    A.e("s_movk_i32 s48, 4608")
    A.e("s_movk_i32 s49, 9216")
    A.e("s_waitcnt lgkmcnt(0)")
    common_srds(g)
    srd(A, 52, 18, SZ_ACT)
    srd(A, 56, 20, SZ_ACT)
    srd(A, 60, 22, 576 * 8)
    K0, V0, K1, V1, SK = 32, 44, 56, 68, 80
    A.vmem("buffer_load_dwordx4 v[80:83], v29, s[60:63], 0 offen", ("a",))
    for i in range(4):
        A.vmem("buffer_load_dword v%d, v27, s[52:55], 0 offen offset:%d" % (K0 + i, i * 1152), ("a",))
    for i in range(8):
        A.vmem("buffer_load_dword v%d, v26, s[52:55], %s offen offset:%d" % (K0 + 4 + i, "0" if i < 4 else "s48", (i % 4) * 1152), ("a",))
    A.vmem("buffer_load_dword v%d, v27, s[56:59], 0 offen offset:3456" % V0, ("a",))
    for i in range(8):
        A.vmem("buffer_load_dword v%d, v26, s[56:59], %s offen offset:%d" % (V0 + 1 + i, "0" if i < 4 else "s48", (i % 4) * 1152), ("a",))
    for i in range(12):
        A.vmem("buffer_load_dword v%d, v28, s[52:55], %s offen offset:%d" % (K1 + i, ("0", "s48", "s49")[i // 4], (i % 4) * 1152), ("b",))
    for i in range(3, 12):
        A.vmem("buffer_load_dword v%d, v28, s[56:59], %s offen offset:%d" % (V1 + i - 3, ("0", "s48", "s49")[i // 4], (i % 4) * 1152), ("b",))
    A.e("s_lshl_b32 s50, s2, 2")
    A.e("s_add_u32 s50, s50, s%d" % sWave)
    A.e("s_lshl_b32 s51, s50, 12")
    A.e("v_lshlrev_b32 v3, 2, v2")
    A.e("v_lshlrev_b32 v5, 4, v2")
    srd(A, 52, 24, SZ_ACT)
    srd(A, 56, 26, 576 * 2)
    srd(A, 40, 16, SZ_ACT)
    for r in range(4):
        A.vmem("buffer_load_dwordx4 v[%d:%d], v5, s[52:55], s51 offen offset:%d" % (192 + 4 * r, 195 + 4 * r, r * 1024), ("h",))
    A.e("s_lshl_b32 s51, s50, 1")
    A.vmem("buffer_load_ushort v208, v6, s[56:59], s51 offen", ("h",))
    row_addrs(A)
    q_loads(A)
    code_prefetch(A, "mega_kernel", "code_end", 256, 210, 64, back=True)
    A.e("s_mov_b32 s64, 0x%x" % OFF_U)
    A.e("s_mov_b32 s65, 0x%x" % (OFF_U + 4096))
    A.e("s_mov_b32 s66, 0x%x" % (OFF_U + 8192))
    A.e("s_mov_b32 s67, 0x%x" % (OFF_U + 12288))
    A.e("s_mov_b32 s47, 0")
    A.wait_vm(("a",))
    g.stamp(1)
    for c in range(2):
        for q in range(2):
            A.e("v_lshlrev_b32 v%d, 16, v%d" % (84 + 4 * c + 2 * q, SK + 2 * c + q))
            A.e("v_and_b32 v%d, 0xffff0000, v%d" % (85 + 4 * c + 2 * q, SK + 2 * c + q))
    Lt = A.newlabel("KVT"); Lx = A.newlabel("KVX")
    A.label(Lt)
    for i in range(12):
        A.e("v_lshlrev_b32 v%d, 16, v%d" % (92 + i, K0 + i))
        A.e("v_and_b32 v%d, 0xffff0000, v%d" % (K0 + i, K0 + i))
    kb = [92, K0]
    for c in range(2):
        for i in range(9):
            d = 104 + 9 * c + i
            A.e("v_mul_f32 v%d, v%d, v%d" % (d, kb[c] + i, 87 + 4 * c))
            A.e("v_fmac_f32 v%d, v%d, v%d" % (d, kb[c] + i + 1, 86 + 4 * c))
            A.e("v_fmac_f32 v%d, v%d, v%d" % (d, kb[c] + i + 2, 85 + 4 * c))
            A.e("v_fmac_f32 v%d, v%d, v%d" % (d, kb[c] + i + 3, 84 + 4 * c))
    for i in range(9):
        A.e("v_lshlrev_b32 v92, 16, v%d" % (V0 + i))
        A.e("v_and_b32 v93, 0xffff0000, v%d" % (V0 + i))
        A.e("v_mul_f32 v%d, v%d, v92" % (104 + i, 104 + i))
        A.e("v_mul_f32 v%d, v%d, v93" % (113 + i, 113 + i))
    for c in range(2):
        for ver in range(2):
            q = 124 + 4 * (2 * c + ver)
            for p in range(4):
                hi = 104 + 9 * c + 8 - ver - 2 * p
                A.e("v_cvt_pk_bf16_f32 v%d, v%d, v%d" % (q + p, hi, hi - 1))
            A.e("buffer_store_dwordx4 v[%d:%d], v30, s[8:11], s%d offen sc1" % (q, q + 3, 64 + 2 * c + ver))
    A.e("s_cmp_lg_u32 s47, 0")
    A.e("s_cbranch_scc1 %s" % Lx)
    A.e("s_mov_b32 s47, 1")
    n_after = len(A.vm) - 1 - max(i for i, t in enumerate(A.vm) if t == ("b",))
    A.e("s_waitcnt vmcnt(%d)" % (n_after + 4))
    for i in range(21):
        A.e("v_mov_b32 v%d, v%d" % (K0 + i, K1 + i))
    A.e("v_subrev_u32 v30, 128, v30")
    A.e("s_branch %s" % Lt)
    A.label(Lx)
    A.e("s_mul_i32 s13, s%d, %d" % (sWave, LSZ))
    A.e("s_mov_b32 s44, s13")
    A.e("s_mul_i32 s48, s%d, %d" % (sWave, USZ))
    A.e("s_add_u32 s48, s48, %d" % (4 * LSZ))
    srd(A, 12, 38, 256)
    A.e("v_lshrrev_b32 v24, 2, v2")
    A.e("v_and_b32 v25, 3, v2")
    A.e("v_mul_u32_u24 v24, 96, v24")
    A.e("v_lshl_add_u32 v24, v25, 4, v24")
    A.e("s_add_u32 s47, s48, %d" % (15 * 96))
    A.e("v_add_u32 v24, s47, v24")
    A.e("v_add_u32 v25, s48, v5")
    A.e("v_and_b32 v26, 15, v2")
    A.e("v_lshrrev_b32 v27, 4, v2")
    A.e("v_lshlrev_b32 v14, 3, v27")
    A.e("v_sub_u32 v14, v14, v26")
    A.e("v_add_u32 v14, 15, v14")
    A.e("v_and_b32 v28, 1, v14")
    A.e("v_mul_u32_u24 v28, %d, v28" % TSZ)
    A.e("v_lshrrev_b32 v14, 1, v14")
    A.e("v_lshl_add_u32 v14, v14, 4, v28")
    A.e("v_add_u32 v14, s44, v14")
    A.e("v_mul_u32_u24 v15, 96, v26")
    A.e("v_lshl_add_u32 v15, v27, 4, v15")
    A.e("v_add_u32 v15, s48, v15")
    for i in range(36, 40):
        A.e("v_mov_b32 v%d, 0" % i)
    get_nonce(g, 6, 32, 47)
    A.e("s_lshl_b32 s49, s45, 7")
    A.e("s_add_u32 s49, s49, 0x%x" % FL_KV)
    A.e("s_lshl_b32 s51, s46, 2")
    A.e("s_add_u32 s51, s51, s49")
    g.publish(51, 6, 32, 47)
    g.stamp(2)
    A.e("ds_write_b128 v25, v[36:39]")
    A.e("ds_write_b128 v25, v[36:39] offset:416")
    for r in range(4):
        A.e("ds_write_b128 v24, v[%d:%d] offset:%d" % (192 + 4 * r, 195 + 4 * r, r * 16 * 96))
    A.e("s_lshl_b32 s47, s50, 13")
    A.e("s_add_u32 s47, s47, 0x%x" % OFF_U)
    A.e("s_add_u32 s52, s4, s47")
    A.e("s_addc_u32 s53, s5, 0")
    A.e("s_movk_i32 s54, 4096")
    A.e("s_mov_b32 s55, 0x20000")
    A.e("s_add_u32 s56, s52, 4096")
    A.e("s_addc_u32 s57, s53, 0")
    A.e("s_movk_i32 s58, 4096")
    A.e("s_mov_b32 s59, 0x20000")
    A.e("v_lshlrev_b32 v33, 2, v26")
    g.spin(49, 33, 32, 47)
    g.stamp(3)
    def piece(p):
        for tb in range(2):
            A.e("s_add_u32 m0, s44, %d" % (tb * TSZ + p * 1024))
            if tb == 0:
                A.e("s_movk_i32 s47, %d" % (256 * p))
                if p == 16:
                    A.e("s_mov_b64 exec, 0xfff")
            else:
                A.e("s_nop 0")
            A.vmem("buffer_load_dwordx4 v3, s[%d:%d], s47 offen sc1 lds" % ((52, 55) if tb == 0 else (56, 59)), ("L", p))
        if p == 16:
            A.e("s_mov_b64 exec, -1")
    def need_pieces(d):
        r = set()
        for q in range(4):
            for mt in range(2):
                i0 = 8 * (127 - 2 * (d + 16 * q) - mt)
                r |= {i0 // 64, (i0 + 19) // 64}
        return sorted(r)
    order = []
    for d in range(16):
        for p in need_pieces(d):
            if p not in order:
                order.append(p)
    npre = len(need_pieces(0))
    for p in order[:npre]:
        piece(p)
    rest = order[npre:]
    vA, vB = 14, 15
    vOp = 64; vAcc = 160
    def areg(d, q, mt): return vOp + (d % 2) * 48 + (q * 2 + mt) * 4
    def breg(d, e): return vOp + (d % 2) * 48 + 32 + e * 4
    def reads(d):
        ops = []
        for e in range(4):
            ops.append(lambda d=d, e=e: A.lds("ds_read_b128 v[%d:%d], v%d offset:%d" % (breg(d, e), breg(d, e) + 3, vB, (16 * e - d + 15) * 96), ("B", d, e)))
        for q in range(4):
            for mt in range(2):
                ops.append(lambda d=d, q=q, mt=mt: A.lds("ds_read_b128 v[%d:%d], v%d offset:%d" % (areg(d, q, mt), areg(d, q, mt) + 3, vA, (127 - 2 * (d + 16 * q) - mt) * 128), ("A", d, q, mt)))
        return [ops[0], ops[4], ops[5], ops[1], ops[2], ops[3]] + ops[6:]
    for p in rest[:3]:
        piece(p)
    rest = rest[3:]
    A.wait_lg0()
    A.wait_vm(*[("L", p) for p in need_pieces(0)])
    g.stamp(4)
    for op in reads(0):
        op()
    for d in range(16):
        nxt = reads(d + 1) if d < 15 else []
        first = True; n = 0
        for q in range(4):
            for nt in range(q, 4):
                for mt in range(2):
                    A.wait_lg(("B", d, nt - q), ("A", d, q, mt))
                    ac = v(vAcc + (nt * 2 + mt) * 4, 4)
                    A.e("v_mfma_f32_16x16x32_bf16 %s, %s, %s, %s" % (ac, v(areg(d, q, mt), 4), v(breg(d, nt - q), 4), "0" if (d == 0 and q == 0) else ac))
                    n += 1
                    if nxt and len(A.lg) < 15:
                        if first:
                            for p in need_pieces(d + 1):
                                A.must(("L", p), 2)
                            A.wait_vm(*[("L", p) for p in need_pieces(d + 1)])
                            first = False
                        nxt.pop(0)()
                    if n in (15, 18) and rest:
                        piece(rest.pop(0))
        assert not nxt
    g.stamp(5)
    A.e("v_lshlrev_b32 v17, 8, v26")
    A.e("v_lshl_add_u32 v17, v27, 5, v17")
    A.e("s_add_u32 s47, s44, %d" % (246 * 16))
    A.e("v_sub_u32 v17, s47, v17")
    for nt in range(4):
        for mt in range(2):
            k = nt * 2 + mt
            A.lds("ds_read_b64 v[%d:%d], v17 offset:%d" % (vOp + 2 * k, vOp + 2 * k + 1, ((3 - nt) * 256 + (1 - mt) * 8) * 16), ("K", k))
    A.e("v_lshlrev_b32 v208, 16, v208")
    A.e("v_mul_u32_u24 v18, 264, v26")
    A.e("v_lshl_add_u32 v18, v27, 5, v18")
    A.e("s_lshl_b32 s47, s%d, 1" % sWave)
    A.e("v_add_u32 v18, s47, v18")
    A.wait_lg0()
    A.e("s_barrier")
    for nt in range(4):
        for mt in range(2):
            k = nt * 2 + mt
            ac = vAcc + k * 4; kr = vOp + 2 * k
            A.e("v_and_b32 v20, 0xffff0000, v%d" % (kr + 1))
            A.e("v_lshlrev_b32 v21, 16, v%d" % (kr + 1))
            A.e("v_and_b32 v22, 0xffff0000, v%d" % kr)
            A.e("v_lshlrev_b32 v23, 16, v%d" % kr)
            for r in range(4):
                A.e("v_fmac_f32 v%d, v%d, v208" % (ac + r, 20 + r))
            for h in range(2):
                A.e("v_cvt_pk_bf16_f32 v%d, v%d, v%d" % (ac + 2 * h, ac + 2 * h, ac + 2 * h + 1))
                off = nt * 16 * 264 + mt * 128 + h * 16
                A.e("ds_write_b16 v18, v%d offset:%d" % (ac + 2 * h, off))
                A.e("ds_write_b16_d16_hi v18, v%d offset:%d" % (ac + 2 * h, off + 8))
    A.e("v_lshrrev_b32 v20, 4, v0")
    A.e("v_and_b32 v21, 15, v0")
    A.e("v_mul_u32_u24 v20, 264, v20")
    A.e("v_lshl_add_u32 v20, v21, 4, v20")
    A.e("v_lshlrev_b32 v21, 4, v0")
    A.e("s_lshl_b32 s47, s2, 14")
    A.e("s_add_u32 s47, s47, 0x%x" % OFF_Y)
    A.e("s_waitcnt lgkmcnt(0)")
    A.e("s_barrier")
    for r in range(4):
        A.e("ds_read_b64 v[%d:%d], v20 offset:%d" % (64 + 4 * r, 65 + 4 * r, r * 16 * 264))
        A.e("ds_read_b64 v[%d:%d], v20 offset:%d" % (66 + 4 * r, 67 + 4 * r, r * 16 * 264 + 8))
    for r in range(4):
        A.e("s_waitcnt lgkmcnt(%d)" % (6 - 2 * r))
        A.e("buffer_store_dwordx4 v[%d:%d], v21, s[8:11], s47 offen sc1" % (64 + 4 * r, 67 + 4 * r))
        if r < 3:
            A.e("s_add_u32 s47, s47, 4096")
    A.e("s_lshl_b32 s51, s2, 2")
    A.e("s_add_u32 s51, s51, 0x%x" % FL_Y)
    g.publish(51, 6, 32, 47)

def common_srds(g):
    A = g.A
    srd(A, 8, 4, WS_BYTES)
    L = A.newlabel("NN")
    A.e("s_or_b32 s12, s2, s%d" % sWave)
    A.e("s_cmp_lg_u32 s12, 0")
    A.e("s_cbranch_scc1 %s" % L)
    srd(A, 12, 38, 256)
    A.e("v_or_b32 v7, 1, v7")
    A.e("buffer_store_dword v7, v6, s[12:15], 0 offen sc1")
    A.label(L)

def gen_prep(g, kind):
    A = g.A
    A.vm = []; A.lg = []
    A.e("v_and_b32 v2, 63, v0")
    A.e("v_lshlrev_b32 v3, 4, v2")
    A.e("s_mul_i32 s47, s%d, 9216" % sWave)
    if kind == "GU":
        A.e("s_mov_b32 s48, 58255")
        A.e("s_movk_i32 s49, 8064")
        for i in range(9):
            A.e("s_add_u32 s50, s47, %d" % (i * 1024))
            A.e("v_add_u32 v%d, s50, v3" % (24 + i))
            A.e("v_lshrrev_b32 v33, 4, v%d" % (24 + i))
            A.e("v_mul_u32_u24 v33, s48, v33")
            A.e("v_lshrrev_b32 v33, 22, v33")
            A.e("v_mad_u32_u24 v%d, v33, s49, v%d" % (24 + i, 24 + i))
        A.e("s_mul_i32 s51, s46, %d" % (32 * 9216))
        A.e("s_mul_i32 s50, s45, 1152")
        A.e("s_add_u32 s51, s51, s50")
        A.e("s_waitcnt lgkmcnt(0)")
        common_srds(g)
        srd(A, 52, 30, D * F * 2)
        srd(A, 56, 32, D * F * 2)
        for r in range(4):
            A.e("s_add_u32 s50, s51, %d" % ((r & 1) * 9 * 32 * 9216))
            for i in range(9):
                A.e("s_add_u32 m0, s47, %d" % (r * 36864 + i * 1024))
                A.e("s_nop 0")
                A.vmem("buffer_load_dwordx4 v%d, s[%d:%d], s50 offen lds" % (24 + i, 52 + 4 * (r >> 1), 55 + 4 * (r >> 1)), ("l", r))
    else:
        A.e("s_waitcnt lgkmcnt(0)")
        common_srds(g)
        srd(A, 52, 34, D * F * 2)
        A.e("s_mul_i32 s51, s45, 576")
        for r in range(4):
            A.e("s_add_u32 s%d, s46, %d" % (60 + r, 5 * r - 9))
            A.e("s_and_b32 s48, s%d, 3" % (60 + r))
            A.e("s_lshl_b32 s48, s48, 7")
            A.e("s_lshr_b32 s49, s%d, 2" % (60 + r))
            A.e("s_lshl_b32 s49, s49, 5")
            A.e("s_add_u32 s48, s48, s49")
            A.e("s_lshl_b32 s49, s%d, 5" % (60 + r))
            A.e("s_cmp_lt_u32 s%d, 16" % (60 + r))
            A.e("s_cselect_b32 s48, s48, s49")
            A.e("s_add_u32 s48, s48, s51")
            A.e("s_mul_i32 s48, s48, 1152")
            A.e("s_add_u32 s48, s48, s47")
            for i in range(9):
                if i % 4 == 0:
                    A.e("s_add_u32 m0, s47, %d" % (r * 36864 + i * 1024))
                    A.e("s_add_u32 s50, s48, %d" % (i * 1024))
                A.vmem("buffer_load_dwordx4 v3, s[52:55], s50 offen offset:%d lds" % ((i % 4) * 1024), ("l", r))
    srd(A, 40, 16, SZ_ACT)
    row_addrs(A)
    q_loads(A)
    A.e("s_lshl_b32 s64, s45, 2")
    A.e("s_add_u32 s64, s64, s%d" % sWave)
    A.e("s_mul_i32 s64, s64, %d" % WSTRIDE)
    A.e("v_lshrrev_b32 v34, 4, v2")
    A.e("v_bfe_u32 v35, v2, 2, 2")
    A.e("v_and_b32 v36, 3, v2")
    A.e("v_lshl_add_u32 v37, v34, %d, v35" % (3 if kind == "GU" else 2))
    A.e("v_mul_u32_u24 v37, 1152, v37")
    A.e("s_lshl_b32 s48, s%d, 8" % sWave)
    A.e("v_lshl_add_u32 v38, v36, %d, v37" % (3 if kind == "GU" else 4))
    A.e("v_add_u32 v38, s48, v38")
    A.e("s_lshl_b32 s48, s%d, 5" % sWave)
    A.e("s_add_u32 s48, s48, 1024")
    A.e("v_lshl_add_u32 v39, v36, 3, v37")
    A.e("v_add_u32 v39, s48, v39")
    if kind == "GU":
        A.e("s_lshl_b32 s65, s46, 13")
        A.e("s_add_u32 s65, s65, s64")
        A.e("s_lshl_b32 s66, s46, 11")
        A.e("s_add_u32 s66, s66, s64")
    Ldone = A.newlabel("PD")
    for r in range(4):
        if kind == "D":
            if r == 3:
                A.e("s_cmp_ge_u32 s63, 18")
                A.e("s_cbranch_scc1 %s" % Ldone)
            A.e("s_mul_i32 s65, s%d, 9" % (60 + r))
            A.e("s_add_u32 s65, s65, 324")
            A.e("s_add_u32 s66, s%d, %d" % (60 + r, 324 + 9 * KA - KA))
            A.e("s_movk_i32 s67, 1024")
            A.e("s_cmp_lt_u32 s%d, %d" % (60 + r, KA))
            A.e("s_cselect_b32 s65, s65, s66")
            A.e("s_cselect_b32 s67, s67, %d" % ((18 - KA) * 1024))
            A.e("s_lshl_b32 s65, s65, 10")
            A.e("s_add_u32 s65, s65, s64")
        A.wait_vm(("l", r))
        A.e("s_barrier")
        g.stamp(1 + r)
        if r:
            A.e("v_add_u32 v38, 36864, v38")
            A.e("v_add_u32 v39, 36864, v39")
        reg = lambda u: 40 + (r % 2) * 36 + u * 4
        def rd(u):
            for h in range(2):
                if kind == "GU":
                    off = h * 4608 + (32 * u if u < 8 else 0)
                else:
                    off = h * 18432 + (64 * (u // 2) + 8 * (u & 1) if u < 8 else 0)
                A.lds("ds_read_b64_tr_b16 v[%d:%d], v%d offset:%d" % (reg(u) + 2 * h, reg(u) + 2 * h + 1, 38 if u < 8 else 39, off), ("t", r, u))
        for u in range(7):
            rd(u)
        for u in range(9):
            A.wait_lg(("t", r, u))
            if kind == "GU":
                m, ko = r >> 1, 9 * (r & 1)
                if u < 4:
                    A.e("s_add_u32 s50, s65, %d" % ((ko * 8 + u * 2 + m) * 1024))
                else:
                    A.e("s_add_u32 s50, s66, %d" % ((144 + (u - 4) * 36 + ko * 2 + m) * 1024))
                so = "s50"
            else:
                so = "s65"
            A.vmem("buffer_store_dwordx4 v[%d:%d], v3, s[8:11], %s offen sc1" % (reg(u), reg(u) + 3, so), ("s", r))
            if kind == "D":
                A.e("s_add_u32 s65, s65, s67")
            if u + 7 < 9:
                rd(u + 7)
    A.label(Ldone)

X = 32
T = 52
YR = 72
PR = 84
M, V = 24, 26
def unpack(A, dst, src, n=9):
    for i in range(n):
        A.e("v_lshlrev_b32 v%d, 16, v%d" % (dst + 2 * i, src + i))
        A.e("v_and_b32 v%d, 0xffff0000, v%d" % (dst + 2 * i + 1, src + i))
def pack(A, dst, src, n=9):
    for i in range(n):
        A.e("v_cvt_pk_bf16_f32 v%d, v%d, v%d" % (dst + i, src + 2 * i, src + 2 * i + 1))
def rnd1(A, r):
    A.e("v_cvt_pk_bf16_f32 v%d, v%d, v%d" % (r, r, r))
    A.e("v_lshlrev_b32 v%d, 16, v%d" % (r, r))
def y_loads(A):
    A.e("s_lshl_b32 s48, s2, 6")
    A.e("s_add_u32 s48, s48, 0x%x" % OFF_Y)
    for i in range(4):
        if i:
            A.e("s_add_u32 s49, s48, %d" % ((i >> 1) * 16 * 16384 + (i & 1) * 16384))
        A.vmem("buffer_load_dwordx2 v[%d:%d], v%d, s[8:11], s%d offen sc1" % (YR + 2 * i, YR + 2 * i + 1, vY, 49 if i else 48), ("y",))
    A.vmem("buffer_load_dword v%d, v%d, s[8:11], s48 offen sc1" % (YR + 8, vY2), ("y",))
def ln_stats(A, rnd):
    A.e("v_pk_add_f32 v[%d:%d], v[%d:%d], v[%d:%d]" % (M, M + 1, X, X + 1, X + 2, X + 3))
    A.e("v_pk_mul_f32 v[%d:%d], v[%d:%d], v[%d:%d]" % (V, V + 1, X, X + 1, X, X + 1))
    for i in range(1, 9):
        if i > 1:
            A.e("v_pk_add_f32 v[%d:%d], v[%d:%d], v[%d:%d]" % (M, M + 1, M, M + 1, X + 2 * i, X + 2 * i + 1))
        A.e("v_pk_fma_f32 v[%d:%d], v[%d:%d], v[%d:%d], v[%d:%d]" % (V, V + 1, X + 2 * i, X + 2 * i + 1, X + 2 * i, X + 2 * i + 1, V, V + 1))
    A.e("v_add_f32 v%d, v%d, v%d" % (M, M, M + 1))
    A.e("v_add_f32 v%d, v%d, v%d" % (M + 1, V, V + 1))
    a_, b_ = M, M + 1
    A.e("s_nop 1")
    for r in (a_, b_):
        A.e("v_add_f32_dpp v%d, v%d, v%d row_ror:8 row_mask:0xf bank_mask:0xf" % (r, r, r))
    for ins in ("v_permlane16_swap_b32", "v_permlane32_swap_b32"):
        A.e("v_mov_b32 v%d, v%d" % (V, a_))
        A.e("v_mov_b32 v%d, v%d" % (V + 1, b_))
        A.e("s_nop 1")
        A.e("%s v%d, v%d" % (ins, a_, V))
        A.e("%s v%d, v%d" % (ins, b_, V + 1))
        A.e("v_pk_add_f32 v[%d:%d], v[%d:%d], v[%d:%d]" % (M, M + 1, M, M + 1, V, V + 1))
    o = rnd * 256
    A.e("ds_write_b64 v14, v[%d:%d] offset:%d" % (M, M + 1, o))
    A.e("s_waitcnt lgkmcnt(0)")
    A.e("s_barrier")
    A.e("ds_read_b128 v[16:19], v15 offset:%d" % o)
    A.e("ds_read_b128 v[20:23], v15 offset:%d" % (o + 16))
    A.e("s_waitcnt lgkmcnt(0)")
    A.e("v_pk_add_f32 v[16:17], v[16:17], v[18:19]")
    A.e("v_pk_add_f32 v[20:21], v[20:21], v[22:23]")
    A.e("v_pk_add_f32 v[16:17], v[16:17], v[20:21]")
    A.e("v_mul_f32 v%d, 0x3ae38e39, v16" % M)
    A.e("v_mul_f32 v%d, 0x3ae38e39, v17" % V)
    A.e("v_fma_f32 v%d, -v%d, v%d, v%d" % (V, M, M, V))
    A.e("v_max_f32 v%d, 0, v%d" % (V, V))
    rnd1(A, M)
    rnd1(A, V)
    A.e("v_add_f32 v%d, 0x3727c5ac, v%d" % (V, V))
    rnd1(A, V)
    A.e("v_sqrt_f32 v%d, v%d" % (V, V))
    A.e("s_nop 0")
    rnd1(A, V)
    A.e("v_rcp_f32 v%d, v%d" % (V, V))
    for i in range(9):
        A.e("v_pk_add_f32 v[%d:%d], v[%d:%d], v[%d:%d] op_sel_hi:[1,0] neg_lo:[0,1] neg_hi:[0,1]" % (T + 2 * i, T + 2 * i + 1, X + 2 * i, X + 2 * i + 1, M, M + 1))
    for i in range(9):
        A.e("v_pk_mul_f32 v[%d:%d], v[%d:%d], v[%d:%d] op_sel_hi:[1,0]" % (T + 2 * i, T + 2 * i + 1, T + 2 * i, T + 2 * i + 1, V, V + 1))

def gen_mega(A, opt):
    g = G(A, opt)
    name = "mega_kernel"
    kernel_begin(A, name)
    Lend, Lprep, LprepD, Lprepd, Lrow0, Lln, Lnoy, Lffn, Lfin = [A.newlabel(n) for n in ("END", "PREP", "PREPD", "PREPX", "ROW0", "LN", "NOY", "FFN", "FIN")]
    A.e("s_cmp_ge_u32 s2, 256")
    A.e("s_cbranch_scc1 %s" % Lend)
    A.e("s_load_dwordx16 s[16:31], s[0:1], 0")
    A.e("s_load_dwordx8 s[32:39], s[0:1], 64")
    A.e("s_load_dwordx2 s[4:5], s[0:1], 96")
    A.e("s_memrealtime s[12:13]")
    A.e("v_lshrrev_b32 v1, 6, v0")
    A.e("v_mov_b32 v6, 0")
    A.e("v_readfirstlane_b32 s%d, v1" % sWave)
    A.e("s_mov_b32 s%d, 0" % sLay)
    if g.prof:
        A.e("v_mov_b32 v%d, 0" % VST)
        g.stamp(0)
    A.e("s_waitcnt lgkmcnt(0)")
    A.e("v_mov_b32 v7, s12")
    A.e("s_cmp_ge_u32 s2, 144")
    A.e("s_cbranch_scc1 %s" % Lprep)
    gen_kvconv(g)
    A.e("s_branch %s" % Lrow0)
    A.label(Lprep)
    A.e("s_and_b32 s45, s2, 7")
    A.e("s_lshr_b32 s46, s2, 3")
    A.e("s_sub_u32 s46, s46, 18")
    A.e("s_cmp_ge_u32 s46, 9")
    A.e("s_cbranch_scc1 %s" % LprepD)
    gen_prep(g, "GU")
    A.e("s_branch %s" % Lprepd)
    A.label(LprepD)
    gen_prep(g, "D")
    A.label(Lprepd)
    srd(A, 12, 38, 256)
    get_nonce(g, 6, 32, 47)
    A.e("s_lshl_b32 s51, s45, 7")
    A.e("s_lshl_b32 s50, s46, 2")
    A.e("s_add_u32 s51, s51, s50")
    A.e("s_add_u32 s51, s51, 0x%x" % FL_W)
    g.publish(51, 6, 32, 47)
    A.label(Lrow0)
    g.stamp(6)
    ffn = FFN(g)
    ffn.setup()
    unpack(A, X, vQ)
    A.label(Lln)
    A.e("v_and_b32 v15, 7, v0")
    A.e("v_lshlrev_b32 v15, 5, v15")
    A.e("v_add_u32 v15, %d, v15" % L_RED)
    A.e("s_lshl_b32 s48, s%d, 3" % sWave)
    A.e("v_add_u32 v14, s48, v15")
    ln_stats(A, 0)
    A.e("s_cmp_lg_u32 s%d, 0" % sLay)
    A.e("s_cbranch_scc1 %s" % Lnoy)
    A.e("v_and_b32 v16, 63, v0")
    A.e("v_min_u32 v16, 35, v16")
    A.e("v_lshlrev_b32 v16, 4, v16")
    A.e("s_mov_b32 s48, 0x%x" % FL_Y)
    g.spin(48, 16, 20, 49, n=4)
    g.stamp(7)
    y_loads(A)
    A.label(Lnoy)
    A.wait_vm0()
    unpack(A, PR, YR)
    for i in range(9):
        A.e("v_pk_fma_f32 v[%d:%d], v[%d:%d], v[%d:%d], v[%d:%d]" % (X + 2 * i, X + 2 * i + 1, T + 2 * i, T + 2 * i + 1, PR + 2 * i, PR + 2 * i + 1, X + 2 * i, X + 2 * i + 1))
    pack(A, YR, X)
    A.e("v_lshlrev_b32 v16, 4, v0")
    A.e("v_lshlrev_b32 v17, 2, v0")
    A.e("v_add_u32 v16, %d, v16" % L_X1)
    A.e("v_add_u32 v17, %d, v17" % (L_X1 + 8192))
    A.e("ds_write_b128 v16, v[%d:%d]" % (YR, YR + 3))
    A.e("ds_write_b128 v16, v[%d:%d] offset:4096" % (YR + 4, YR + 7))
    A.e("ds_write_b32 v17, v%d" % (YR + 8))
    unpack(A, X, YR)
    ln_stats(A, 1)
    pack(A, YR, T)
    A.e("s_add_u32 s48, s%d, 0x%x" % (ffn.sRowT, OFF_XN))
    A.e("s_add_u32 s49, s48, 8192")
    A.e("buffer_store_dwordx4 v[%d:%d], v%d, s[8:11], s48 offen sc1" % (YR, YR + 3, vT))
    A.e("buffer_store_dwordx4 v[%d:%d], v%d, s[8:11], s49 offen sc1" % (YR + 4, YR + 7, vT))
    A.e("buffer_store_dword v%d, v%d, s[8:11], s48 offen sc1" % (YR + 8, vT2))
    A.e("s_lshl_b32 s51, s2, 2")
    A.e("s_add_u32 s51, s51, s%d" % sLay)
    A.e("s_add_u32 s51, s51, 0x%x" % FL_XN)
    g.publish(51, 6, 16, 47)
    g.stamp(8)
    A.e("s_cmp_lg_u32 s%d, 0" % sLay)
    A.e("s_cbranch_scc1 %s" % Lffn)
    A.e("v_and_b32 v16, 63, v0")
    A.e("v_min_u32 v16, 13, v16")
    A.e("v_lshlrev_b32 v16, 2, v16")
    A.e("s_and_b32 s48, s2, 7")
    A.e("s_lshl_b32 s48, s48, 7")
    A.e("s_add_u32 s48, s48, 0x%x" % FL_W)
    g.spin(48, 16, 20, 49)
    ffn.prefill()
    A.label(Lffn)
    A.e("v_and_b32 v16, 7, v0")
    A.e("v_lshlrev_b32 v16, 2, v16")
    A.e("s_and_b32 s48, s2, 0xe0")
    A.e("s_lshl_b32 s48, s48, 2")
    A.e("s_lshl_b32 s49, s%d, 5" % sWave)
    A.e("s_add_u32 s48, s48, s49")
    A.e("s_add_u32 s48, s48, s%d" % sLay)
    A.e("s_add_u32 s48, s48, 0x%x" % FL_XN)
    g.spin(48, 16, 20, 49)
    g.stamp(9)
    ffn.main()
    g.stamp(13)
    A.e("s_lshl_b32 s51, s2, 2")
    A.e("s_add_u32 s51, s51, s%d" % sLay)
    A.e("s_add_u32 s51, s51, 0x%x" % FL_P)
    g.publish(51, 6, 16, 47)
    Lnp = A.newlabel("NP")
    A.e("s_cmp_lg_u32 s%d, 0" % sLay)
    A.e("s_cbranch_scc1 %s" % Lnp)
    y_loads(A)
    ffn.prefill()
    A.label(Lnp)
    A.e("v_lshlrev_b32 v16, 4, v0")
    A.e("v_lshlrev_b32 v17, 2, v0")
    A.e("v_add_u32 v16, %d, v16" % L_X1)
    A.e("v_add_u32 v17, %d, v17" % (L_X1 + 8192))
    A.e("ds_read_b128 v[%d:%d], v16" % (vQ, vQ + 3))
    A.e("ds_read_b128 v[%d:%d], v16 offset:4096" % (vQ + 4, vQ + 7))
    A.e("ds_read_b32 v%d, v17" % (vQ + 8))
    A.e("s_load_dwordx2 s[52:53], s[0:1], %d" % A_OUT)
    A.e("v_and_b32 v16, 31, v0")
    A.e("v_lshlrev_b32 v16, 2, v16")
    A.e("s_and_b32 s48, s2, 0xe0")
    A.e("s_lshl_b32 s48, s48, 2")
    A.e("s_add_u32 s48, s48, s%d" % sLay)
    A.e("s_add_u32 s48, s48, 0x%x" % FL_P)
    for i in range(18):
        A.e("v_mov_b32 v%d, 0" % (T + i))
    A.e("s_mov_b32 s50, 0x3f80")
    A.e("s_mov_b32 s51, 0x3f800000")
    A.e("s_waitcnt lgkmcnt(0)")
    unpack(A, X, vQ)
    g.spin(48, 16, 20, 49)
    g.stamp(14)
    for p in range(8):
        A.e("s_add_u32 s48, s%d, 0x%x" % (ffn.sRowT, OFF_P + p * SZ_ACT))
        A.e("s_add_u32 s49, s48, 8192")
        b = PR + 12 * p
        A.vmem("buffer_load_dwordx4 v[%d:%d], v%d, s[8:11], s48 offen sc1" % (b, b + 3, vT), ("P", p))
        A.vmem("buffer_load_dwordx4 v[%d:%d], v%d, s[8:11], s49 offen sc1" % (b + 4, b + 7, vT), ("P", p))
        A.vmem("buffer_load_dword v%d, v%d, s[8:11], s48 offen sc1" % (b + 8, vT2), ("P", p))
    for p in range(8):
        A.wait_vm(("P", p))
        for i in range(9):
            A.e("v_dot2c_f32_bf16 v%d, s50, v%d" % (T + 2 * i, PR + 12 * p + i))
            A.e("v_dot2c_f32_bf16 v%d, s51, v%d" % (T + 2 * i + 1, PR + 12 * p + i))
    A.e("s_nop 2")
    pack(A, PR, T)
    unpack(A, T, PR)
    for i in range(9):
        A.e("v_pk_add_f32 v[%d:%d], v[%d:%d], v[%d:%d]" % (X + 2 * i, X + 2 * i + 1, X + 2 * i, X + 2 * i + 1, T + 2 * i, T + 2 * i + 1))
    pack(A, PR, X)
    A.e("s_cmp_lg_u32 s%d, 0" % sLay)
    A.e("s_cbranch_scc1 %s" % Lfin)
    unpack(A, X, PR)
    A.e("s_movk_i32 s%d, 0x400" % sLay)
    A.e("s_branch %s" % Lln)
    A.label(Lfin)
    A.e("s_mov_b32 s54, 0x%x" % SZ_ACT)
    A.e("s_mov_b32 s55, 0x20000")
    A.e("s_mul_i32 s48, s2, 9216")
    A.e("buffer_store_dwordx4 v[%d:%d], v%d, s[52:55], s48 offen" % (PR, PR + 3, vR))
    A.e("buffer_store_dwordx4 v[%d:%d], v%d, s[52:55], s48 offen offset:128" % (PR + 4, PR + 7, vR))
    A.e("buffer_store_dword v%d, v%d, s[52:55], s48 offen offset:1024" % (PR + 8, vR2))
    g.stamp_end()
    A.label(Lend)
    A.e("s_endpgm")
    ffn.slow_paths()
    A.raw(".p2align 6")
    A.raw("code_end:")
    A.e("s_endpgm")
    return descriptor(name, 512, 256)

class FFN:
    sWoff, sXoff, sHoff, sM0b, sT, sT2, sT3, sPoff, sFoff, sJq, sHst, sTmp, sCnt, sTail, sRowT, sFw = range(16, 32)
    vL16, vL8, vRd, vP8, vZ, vFv = 1, 2, 3, 5, 6, 7
    vPoll = 216
    vWB, vAcc, vU, vXo = 16, 40, 184, 224
    def __init__(self, g):
        self.g = g; self.A = g.A; self.opt = g.opt; self.slow = []
        self.NPRE = g.opt.get("NPRE", 8)
    def setup(self):
        A = self.A; f = self
        A.e("v_and_b32 v16, 63, v0")
        A.e("v_lshlrev_b32 v%d, 4, v16" % f.vL16)
        A.e("v_lshlrev_b32 v%d, 3, v16" % f.vL8)
        A.e("v_and_b32 v17, 15, v16")
        A.e("v_lshrrev_b32 v18, 4, v16")
        A.e("v_lshlrev_b32 v17, 4, v17")
        A.e("v_lshrrev_b32 v19, 1, v18")
        A.e("v_lshl_add_u32 v17, v19, 8, v17")
        A.e("v_and_b32 v18, 1, v18")
        A.e("v_lshl_add_u32 v%d, v18, 3, v17" % f.vP8)
        A.e("v_mov_b32 v%d, s%d" % (f.vFv, sNonce))
        A.e("s_and_b32 s42, s2, 7")
        A.e("s_lshr_b32 s43, s2, 3")
        A.e("s_and_b32 s%d, s43, 3" % f.sJq)
        A.e("s_mul_i32 s%d, s43, 73728" % f.sRowT)
        A.e("s_bfe_u32 s44, s2, 0x20001")
        A.e("s_lshl_b32 s44, s44, 10")
        A.e("s_add_u32 s%d, s%d, s44" % (f.sRowT, f.sRowT))
        A.e("s_and_b32 s44, s2, 1")
        A.e("s_lshl_b32 s44, s44, 7")
        A.e("s_add_u32 s%d, s%d, s44" % (f.sRowT, f.sRowT))
        A.e("s_lshr_b32 s43, s43, 2")
        A.e("s_lshl_b32 s44, s42, 2")
        A.e("s_add_u32 s44, s44, s%d" % f.sJq)
        A.e("s_mul_i32 s%d, s44, %d" % (f.sWoff, WSTRIDE))
        A.e("s_mul_i32 s%d, s%d, 3072" % (f.sM0b, sWave))
        A.e("s_add_u32 s%d, s%d, s%d" % (f.sWoff, f.sWoff, f.sM0b))
        A.e("s_lshl_b32 s45, s43, 2")
        A.e("s_add_u32 s45, s45, s%d" % sWave)
        A.e("s_mul_i32 s45, s45, 73728")
        A.e("s_add_u32 s%d, s45, 0x%x" % (f.sXoff, OFF_XN))
        A.e("s_mul_i32 s46, s42, %d" % SZ_ACT)
        A.e("s_add_u32 s45, s45, s46")
        A.e("s_add_u32 s%d, s45, 0x%x" % (f.sHoff, OFF_HX))
        A.e("s_lshl_b32 s47, s%d, 12" % f.sJq)
        A.e("s_add_u32 s%d, s%d, s47" % (f.sHst, f.sHoff))
        A.e("s_lshl_b32 s47, s%d, 14" % f.sJq)
        A.e("s_add_u32 s%d, s45, s47" % f.sPoff)
        A.e("s_add_u32 s%d, s%d, 0x%x" % (f.sPoff, f.sPoff, OFF_P))
        A.e("s_lshr_b32 s46, s%d, 1" % f.sJq)
        A.e("s_lshl_b32 s46, s46, 12")
        A.e("s_and_b32 s47, s%d, 1" % f.sJq)
        A.e("s_lshl_b32 s47, s47, 9")
        A.e("s_add_u32 s46, s46, s47")
        A.e("s_add_u32 s46, s46, 65536")
        A.e("s_add_u32 s%d, s46, s%d" % (f.sTail, f.sHoff))
        A.e("s_lshl_b32 s47, s43, 3")
        A.e("s_add_u32 s47, s47, s42")
        A.e("s_lshl_b32 s47, s47, 7")
        A.e("s_add_u32 s%d, s47, 0x%x" % (f.sFoff, FL_H))
    def dma_ops(self, c):
        A = self.A; f = self; ops = []
        def f0(c=c):
            A.e("s_add_u32 m0, s%d, %d" % (f.sM0b, (c % 12) * 12288))
            A.e("s_add_u32 s%d, s%d, %d" % (f.sT, f.sWoff, c * 12288))
            A.vmem("buffer_load_dwordx4 v%d, s[8:11], s%d offen sc1 lds" % (f.vL16, f.sT), ("W", c))
        ops.append(f0)
        for q in (1, 2):
            ops.append(lambda q=q, c=c: A.vmem("buffer_load_dwordx4 v%d, s[8:11], s%d offen offset:%d sc1 lds" % (f.vL16, f.sT, q * 1024), ("W", c)))
        return ops
    def prefill(self):
        for c in range(self.NPRE):
            for op in self.dma_ops(c):
                op()
    def main(self):
        A = self.A; f = self; opt = self.opt; g = self.g
        PD = opt.get("PD", 5); NB = PD + 1
        vAcc, vU, vXo, vWB, vL16, vL8, vRd, vP8, vZ, vFv, vPoll = f.vAcc, f.vU, f.vXo, f.vWB, f.vL16, f.vL8, f.vRd, f.vP8, f.vZ, f.vFv, f.vPoll
        A.vm = []; A.lg = []; A.issued = {}
        for c in range(f.NPRE):
            A.issued[("W", c)] = 3
        A.e("s_lshr_b32 s%d, s%d, 4" % (f.sCnt, sLay))
        A.e("s_add_u32 s32, s%d, s%d" % (f.sFoff, f.sCnt))
        A.e("s_lshl_b32 s%d, s%d, 2" % (f.sFw, f.sJq))
        A.e("s_add_u32 s%d, s%d, s32" % (f.sFw, f.sFw))
        A.e("s_lshl_b32 s%d, s%d, 28" % (f.sCnt, sWave))
        A.e("s_add_u32 s%d, s%d, s%d" % (f.sFw, f.sFw, f.sCnt))
        A.e("s_add_u32 s33, s%d, 0x%x" % (f.sTail, OFF_P - OFF_HX))
        def opreg(ks, tt, half=None):
            i = ks * 4 + tt
            if i < 64:
                return a(i * 4, 4)
            b = vXo + (i - 64) * 4
            return v(b, 4) if half is None else v(b + 2 * half, 2)
        slot = {0: vAcc, 1: vAcc + 32, 2: vAcc + 64, 3: vAcc + 96, 4: vU, 5: vAcc, 6: vAcc + 32, 7: vAcc + 64, 8: vU}
        acc1 = lambda u, m, tt: slot[u] + m * 16 + tt * 4
        acc2 = lambda i, tt: vAcc + i * 16 + tt * 4
        steps = g1_steps() + g2_steps(KA)
        NS = len(steps)
        bars = opt.get("bars") or ([0] + list(range(f.NPRE, 12)) + [12, 14, 16, 18, 20, 21, 22, 23, 24, 25, 26, 27, 28, 29, 30, 31, 32, 33, 34, 35, 37, 39])
        bars = sorted(set(bars) | set(opt.get("xbars", [2, 4, 6])))
        def bar_cover(x):
            i = bars.index(x)
            return list(range(x, bars[i + 1] if i + 1 < len(bars) else 41))
        def ld_ops(kind, ks):
            ops = []
            base = f.sXoff if kind == "X" else f.sHoff
            for tt in range(4):
                if kind == "X" or ks < 16:
                    def fn(ks=ks, tt=tt):
                        if tt == 0:
                            A.e("s_add_u32 s%d, s%d, %d" % (f.sT2, base, ks * 4096))
                        A.vmem("buffer_load_dwordx4 %s, v%d, s[8:11], s%d offen offset:%d sc1" % (opreg(ks, tt), vL16, f.sT2, tt * 1024), (kind, ks, tt))
                    ops.append(fn)
                else:
                    for hf in range(2):
                        def fn(ks=ks, tt=tt, hf=hf):
                            if tt == 0 and hf == 0:
                                A.e("s_add_u32 s%d, s%d, %d" % (f.sT2, base, ks * 4096))
                            A.vmem("buffer_load_dwordx2 %s, v%d, s[8:11], s%d offen offset:%d sc1" % (opreg(ks, tt, hf), vL8, f.sT2, tt * 1024 + hf * 512), (kind, ks, tt))
                        ops.append(fn)
            return ops
        def epi1_ops(u):
            ops = []; ue = u & ~1
            for tt in range(4):
                gg = acc1(u, 0, tt); up = acc1(u, 1, tt); q = acc1(ue, 1, tt) + 2 * (u & 1)
                for r in range(4):
                    ops.append(lambda gg=gg, r=r: A.e("v_max_f32 v%d, 0, v%d" % (gg + r, gg + r)))
                for r in range(4):
                    ops.append(lambda gg=gg, up=up, r=r: A.e("v_mul_f32 v%d, v%d, v%d" % (gg + r, gg + r, up + r)))
                for p in range(2):
                    ops.append(lambda gg=gg, q=q, p=p: A.e("v_cvt_pk_bf16_f32 v%d, v%d, v%d" % (q + p, gg + 2 * p, gg + 2 * p + 1)))
                if u & 1:
                    def st(u=u, tt=tt, ue=ue):
                        if tt == 0:
                            A.e("s_add_u32 s%d, s%d, %d" % (f.sT3, f.sHst, (u // 2) * 16384))
                        qq = acc1(ue, 1, tt)
                        A.vmem("buffer_store_dwordx4 v[%d:%d], v%d, s[8:11], s%d offen offset:%d sc1" % (qq, qq + 3, vL16, f.sT3, tt * 1024), ("S", u))
                    ops.append(st)
                elif u == 8:
                    def st(tt=tt):
                        qq = acc1(8, 1, tt)
                        A.vmem("buffer_store_dwordx2 v[%d:%d], v%d, s[8:11], s%d offen offset:%d sc1" % (qq, qq + 1, vL8, f.sTail, tt * 1024), ("S", 8))
                    ops.append(st)
            return ops
        def epi2_ops(i):
            ops = []; ie = i & ~1
            for tt in range(4):
                ac = acc2(i, tt); q = acc2(ie, tt) + 2 * (i & 1)
                for p in range(2):
                    ops.append(lambda ac=ac, q=q, p=p: A.e("v_cvt_pk_bf16_f32 v%d, v%d, v%d" % (q + p, ac + 2 * p, ac + 2 * p + 1)))
                if i & 1:
                    def st(i=i, tt=tt, ie=ie):
                        if tt == 0:
                            A.e("s_add_u32 s%d, s%d, %d" % (f.sT3, f.sPoff, (i // 2) * 4096))
                        qq = acc2(ie, tt)
                        A.vmem("buffer_store_dwordx4 v[%d:%d], v%d, s[8:11], s%d offen offset:%d sc1" % (qq, qq + 3, vL16, f.sT3, tt * 1024), ("P", i))
                    ops.append(st)
                elif i == 8:
                    def st(tt=tt):
                        qq = acc2(8, tt)
                        A.vmem("buffer_store_dwordx2 v[%d:%d], v%d, s[8:11], s33 offen offset:%d sc1" % (qq, qq + 1, vP8, tt * 1024), ("P", 8))
                    ops.append(st)
            return ops
        def flag_store(val):
            A.vmem("buffer_store_dword v%d, v%d, s[8:11], s%d offen offset:%d sc1" % (vFv, vZ, f.sFw, (val - 1) * 16), ("F", val))
        def poll_issue(val):
            A.vmem("buffer_load_dwordx4 v[%d:%d], v%d, s[8:11], s32 offen offset:%d sc1" % (vPoll, vPoll + 3, vZ, (val - 1) * 16), ("Q", val))
        def check():
            for i in range(4):
                A.e("v_xor_b32 v%d, v%d, v%d" % (vPoll + i, vFv, vPoll + i))
            A.e("v_or3_b32 v%d, v%d, v%d, v%d" % (vPoll, vPoll, vPoll + 1, vPoll + 2))
            A.e("v_or_b32 v%d, v%d, v%d" % (vPoll, vPoll, vPoll + 3))
            A.e("v_cmp_ne_u32 vcc, 0, v%d" % vPoll)
        f.check = check
        def poll_check(val):
            A.wait_vm(("Q", val))
            Lok = A.newlabel("PK"); Lsl = A.newlabel("PS")
            check()
            A.e("s_cbranch_vccnz %s" % Lsl)
            A.label(Lok)
            f.slow.append((Lsl, Lok, val))
        GAP = opt.get("GAP", 5); PRO = opt.get("PRO", 12)
        P1i, P1c = opt.get("P1", (274, 286)); P2i, P2c = opt.get("P2", (338, 348)); P3i, P3c = opt.get("P3", (374, 384))
        barstep = {c: 12 * c - PD for c in bars}
        bar_of = lambda c: max(b for b in bars if b <= c)
        Q = {"W": [], "X": [], "S": []}
        for c in range(f.NPRE, 41):
            e = -1 if c < 12 else barstep[min(b for b in bars if b >= c - 10)] + 0.3
            Q["W"] += [[e, barstep[bar_of(c)], op] for op in f.dma_ops(c)]
        for ks in range(18):
            Q["X"] += [[-1, 8 * ks, op] for op in ld_ops("X", ks)]
        hneed = lambda kk: 324 + 9 * kk if kk < KA else 324 + 9 * KA + (kk - KA)
        for kk in range(18):
            e = 288 + 2 * kk + 2 if kk < 12 else (P2c if kk < 16 else P3c)
            Q["X"] += [[e, hneed(kk) - opt.get("HEARLY", 10), op] for op in ld_ops("H", kk)]
        ev = {}
        for i, fn in ((P1i, lambda: poll_issue(1)), (P1c, lambda: poll_check(1)), (P2i, lambda: poll_issue(2)), (P2c, lambda: poll_check(2)),
                      (P3i, lambda: poll_issue(3)), (P3c, lambda: poll_check(3))):
            ev.setdefault(i, []).append(fn)
        pub = {21: (1, [("S", 1), ("S", 3), ("S", 5)]), 27: (2, [("S", 7)]), 30: (3, [("S", 8)])}
        eq = []
        def pick(now):
            best = None
            for k, q in Q.items():
                if q and q[0][0] <= now and (best is None or q[0][1] < Q[best][0][1]):
                    best = k
            return best
        for _ in range(PRO):
            Q[pick(-1)].pop(0)[2]()
        def issue_read(i):
            if i >= NS: return
            c = i // 12
            if i % 12 == 0 and c in bars:
                tags = [("W", x) for x in bar_cover(c)]
                for tg in tags:
                    while A.issued.get(tg, 0) < 3:
                        print("late W", tg, "at step", i)
                        Q["W"].pop(0)[2]()
                if c in pub:
                    for tg in pub[c][1]:
                        A.must(tg, 4)
                    tags += pub[c][1]
                A.wait_vm(*tags)
                A.e("s_barrier")
                if c in pub:
                    flag_store(pub[c][0])
            if i % 36 == 0:
                A.e("v_add_u32 v%d, %d, v%d" % (vRd, ((i // 36) % 4) * 36864, vL16))
            A.lds("ds_read_b128 v[%d:%d], v%d offset:%d" % (vWB + (i % NB) * 4, vWB + (i % NB) * 4 + 3, vRd, (i % 36) * 1024), ("R", i))
        for i in range(PD):
            issue_read(i)
        last = -100
        marks = (144, 324, 324 + 9 * KA)
        for i, (kind, u, m, ks) in enumerate(steps):
            if i in marks:
                g.stamp(10 + marks.index(i))
            for fn in ev.get(i, []):
                fn()
            wb = v(vWB + (i % NB) * 4, 4)
            if ks == 0:
                pend = set(e[2] for e in eq) | set(e[3] for e in Q["S"])
                if kind == "g1":
                    bad = [("S", o | 1) for o in range(u) if slot[o] == slot[u]] + [("S", o) for o in range(u) if slot[o] == slot[u]]
                else:
                    bad = [("S", o) for o in range(8)]
                assert not (pend & set(bad)), (i, pend)
            A.wait_lg(("R", i))
            for tt in range(4):
                tg = ("X" if kind == "g1" else "H", ks, tt)
                while A.issued.get(tg, 0) < (2 if (kind == "g2" and ks >= 16) else 1):
                    assert Q["X"][0][0] <= i
                    print("late", tg, "at step", i)
                    Q["X"].pop(0)[2]()
                A.wait_vm(tg)
                ac = v(acc1(u, m, tt) if kind == "g1" else acc2(u, tt), 4)
                A.e("v_mfma_f32_16x16x32_bf16 %s, %s, %s, %s" % (ac, wb, opreg(ks, tt), "0" if ks == 0 else ac))
                now = i + tt / 4.0; slotn = 4 * i + tt; did = 0
                if tt == 0:
                    issue_read(i + PD); did = 1
                if slotn - last >= GAP and len(A.vm) < 60:
                    k = pick(now)
                    if k is not None:
                        Q[k].pop(0)[2]()
                        last = slotn - (2 if "dwordx2" in A.lines[-1] else 0)
                        did += 1
                for _ in range(2 - did):
                    if eq and eq[0][0] <= i:
                        e = eq.pop(0)
                        if e[3]:
                            Q["S"].append([now, now - 100, e[1], e[2]])
                        else:
                            e[1]()
            if kind == "g1" and ks == 17 and m == 1:
                eq += [(max(i + 3, 146), op, ("S", u), op.__name__ == "st") for op in epi1_ops(u)]
            if kind == "g2" and ks == 17:
                eq += [(i + 3, op, ("P", u), op.__name__ == "st") for op in epi2_ops(u)]
        assert not Q["W"] and not Q["X"]
        for e in Q["S"]:
            e[2]()
        A.e("s_nop 7")
        for e in eq:
            e[1]()
    def slow_paths(self):
        A = self.A; f = self
        for Lsl, Lok, val in f.slow:
            A.label(Lsl)
            A.e("s_mov_b32 s%d, 0x20000" % f.sCnt)
            Lp = A.newlabel("PL")
            A.label(Lp)
            A.e("buffer_load_dwordx4 v[%d:%d], v%d, s[8:11], s32 offen offset:%d sc1" % (f.vPoll, f.vPoll + 3, f.vZ, (val - 1) * 16))
            A.e("s_sub_u32 s%d, s%d, 1" % (f.sCnt, f.sCnt))
            A.e("s_waitcnt vmcnt(0)")
            f.check()
            A.e("s_cmp_eq_u32 s%d, 0" % f.sCnt)
            A.e("s_cbranch_scc1 %s" % Lok)
            A.e("s_cbranch_vccnz %s" % Lp)
            A.e("s_branch %s" % Lok)
```

```python
import sys, json
sys.path.insert(0, "gen")
from asmlib import *
from mega import *
out = sys.argv[1]
opt = json.loads(sys.argv[2]) if len(sys.argv) > 2 else {}
hdr = open("interleave_layers__ssm_conv_h3__glu_gated_reglu__prompt.s.ref").read().split("\n")
A = Asm()
for l in hdr[:14]:
    A.raw(l)
A.raw("; @launch kernel=mega_kernel grid=(256,1,1) block=(256,1,1) lds=%d" % LDS_BYTES)
A.raw('.amdgcn_target "amdgcn-amd-amdhsa--gfx950"')
A.raw(".text")
d = gen_mega(A, opt)
A.raw('.section .rodata,"a"')
A.raw(d)
open(out, "w").write(A.text())
```

```python
from asmlib import *
from layout import *

FL_KV, FL_Y, FL_XN, FL_P, FL_H = [OFF_FL + o for o in (0x00000, 0x08000, 0x10000, 0x20000, 0x30000)]
LAY1 = 0x8000
TSZ = 1036 * 16
LSZ = 2 * TSZ
USZ = 79 * 96
LDS_BYTES = 163840
NR = 32
L_RED = 131072
L_X1 = 131072 + 1024
L_Y = L_X1 + 9216

sWave, sNonce, sLay, sWS = 3, 6, 7, 8
VST = 223

class G:
    def __init__(self, A, opt):
        self.A = A; self.opt = opt; self.prof = opt.get("prof"); self.slow = []
    def stamp(self, k):
        if not self.prof: return
        A = self.A
        A.e("s_memtime s[68:69]" if self.opt.get("cyc") else "s_memrealtime s[68:69]")
        A.e("s_mov_b32 s70, m0")
        A.e("s_lshr_b32 m0, s%d, 10" % sLay)
        A.e("s_add_u32 m0, m0, %d" % k)
        A.wait_lg0()
        A.e("v_writelane_b32 v%d, s68, m0" % VST)
        A.e("s_mov_b32 m0, s70")
    def stamp_end(self):
        if not self.prof: return
        A = self.A
        A.wait_vm0()
        self.stamp(15)
        A.e("v_and_b32 v1, 63, v0")
        A.e("v_lshlrev_b32 v1, 2, v1")
        A.e("s_lshl_b32 s68, s2, 8")
        A.e("s_lshl_b32 s69, s%d, 28" % sWave)
        A.e("s_add_u32 s68, s68, s69")
        A.e("s_add_u32 s68, s68, 0x%x" % OFF_TS)
        A.e("buffer_store_dword v%d, v1, s[8:11], s68 offen" % VST)
    def publish(self, soff, vt, st, keep=0):
        A = self.A
        A.e("v_mov_b32 v%d, s%d" % (vt, sNonce))
        A.e("s_lshl_b32 s%d, s%d, 28" % (st, sWave))
        A.e("s_add_u32 s%d, s%d, s%d" % (st, st, soff))
        A.e("s_waitcnt vmcnt(%d) lgkmcnt(0)" % keep)
        A.vm = []; A.lg = []
        A.e("s_barrier")
        A.vmem("buffer_store_dword v%d, off, s[8:11], s%d sc1" % (vt, st), ("flag",))
    def spin(self, soff, nflags, vt, st, sleep=None):
        A = self.A
        sleep = self.opt.get("sleep", 2) if sleep is None else sleep
        n = (nflags + 63) // 64
        L = A.newlabel("SP"); Lo = A.newlabel("SO"); L1 = A.newlabel("SF")
        A.e("s_cmp_lg_u32 s%d, 0" % sWave)
        A.e("s_cbranch_scc1 %s" % Lo)
        for i in range(n):
            A.e("v_add_u32 v%d, %d, v0" % (vt + n + i, 64 * i))
            A.e("v_min_u32 v%d, %d, v%d" % (vt + n + i, nflags - 1, vt + n + i))
            A.e("v_lshlrev_b32 v%d, 7, v%d" % (vt + n + i, vt + n + i))
        if nflags < 64:
            A.e("s_mov_b64 exec, 0x%x" % ((1 << nflags) - 1))
        A.e("s_mov_b32 s%d, 0x20000" % st)
        A.e("s_branch %s" % L1)
        A.label(L)
        A.e("s_mov_b64 exec, vcc")
        if sleep:
            A.e("s_sleep %d" % sleep)
        A.label(L1)
        for i in range(n):
            A.e("buffer_load_dword v%d, v%d, s[8:11], s%d offen sc1" % (vt + i, vt + n + i, soff))
        A.e("s_sub_u32 s%d, s%d, 1" % (st, st))
        A.e("s_waitcnt vmcnt(0)")
        for i in range(n):
            A.e("v_xor_b32 v%d, s%d, v%d" % (vt + i, sNonce, vt + i))
        for i in range(1, n):
            A.e("v_or_b32 v%d, v%d, v%d" % (vt, vt, vt + i))
        A.e("v_cmp_ne_u32 vcc, 0, v%d" % vt)
        A.e("s_cmp_eq_u32 s%d, 0" % st)
        A.e("s_cbranch_scc1 %s" % Lo)
        A.e("s_cbranch_vccnz %s" % L)
        A.label(Lo)
        A.e("s_mov_b64 exec, -1")
        A.e("s_waitcnt vmcnt(0)")
        A.e("s_barrier")
        A.vm = []

def get_nonce(g, vt, st):
    A = g.A
    L = A.newlabel("NC"); Lo = A.newlabel("NO")
    A.e("s_mov_b32 s%d, 0x20000" % st)
    A.label(L)
    A.e("buffer_load_dword v%d, off, s[12:15], 0 sc1" % vt)
    A.e("s_sub_u32 s%d, s%d, 1" % (st, st))
    A.e("s_waitcnt vmcnt(0)")
    A.e("v_readfirstlane_b32 s%d, v%d" % (sNonce, vt))
    A.e("s_cmp_eq_u32 s%d, 0" % st)
    A.e("s_cbranch_scc1 %s" % Lo)
    A.e("s_cmp_eq_u32 s%d, 0" % sNonce)
    A.e("s_cbranch_scc1 %s" % L)
    A.label(Lo)
    A.vm = []

vT, vT2, vT2p, vR, vR2, vY, vY2 = 184, 185, 186, 187, 188, 189, 190
vQ = 240

def row_addrs(A, which="TRY"):
    A.e("v_and_b32 v16, 7, v0")
    A.e("v_bfe_u32 v17, v0, 3, 2")
    A.e("v_bfe_u32 v18, v0, 5, 1")
    A.e("v_lshrrev_b32 v19, 6, v0")
    A.e("v_lshl_add_u32 v20, v19, 2, v18")
    A.e("v_lshl_add_u32 v21, v19, 1, v18")
    if "T" in which:
        A.e("v_lshlrev_b32 v%d, 4, v16" % vT)
        A.e("v_lshl_add_u32 v%d, v17, 8, v%d" % (vT, vT))
        A.e("v_lshl_add_u32 v%d, v20, 12, v%d" % (vT, vT))
        A.e("v_bfe_u32 v22, v0, 4, 2")
        A.e("v_lshl_add_u32 v22, v22, 4, v16")
        A.e("v_bfe_u32 v23, v0, 3, 1")
        A.e("v_lshlrev_b32 v23, 2, v23")
        A.e("v_lshrrev_b32 v24, 1, v19")
        A.e("v_lshl_add_u32 v23, v24, 12, v23")
        A.e("v_add_u32 v23, 65536, v23")
        A.e("v_and_b32 v24, 1, v19")
        A.e("v_lshl_add_u32 v%d, v22, 4, v23" % vT2)
        A.e("v_lshl_add_u32 v%d, v24, 3, v%d" % (vT2, vT2))
        A.e("v_lshl_add_u32 v%d, v22, 3, v23" % vT2p)
        A.e("v_lshl_add_u32 v%d, v24, 9, v%d" % (vT2p, vT2p))
    if "R" in which:
        A.e("v_mul_u32_u24 v22, 1152, v16")
        A.e("v_lshl_add_u32 v%d, v20, 6, v22" % vR)
        A.e("v_lshl_add_u32 v%d, v17, 3, v%d" % (vR, vR))
        A.e("v_lshl_add_u32 v%d, v21, 4, v22" % vR2)
        A.e("v_lshl_add_u32 v%d, v17, 2, v%d" % (vR2, vR2))
    if "Y" in which:
        A.e("v_lshlrev_b32 v22, 3, v16")
        A.e("v_lshl_add_u32 v%d, v20, 17, v22" % vY)
        A.e("v_lshl_add_u32 v%d, v17, 14, v%d" % (vY, vY))
        A.e("v_lshl_add_u32 v%d, v21, 15, v22" % vY2)
        A.e("v_lshrrev_b32 v22, 1, v17")
        A.e("v_lshl_add_u32 v%d, v22, 14, v%d" % (vY2, vY2))
        A.e("v_and_b32 v22, 1, v17")
        A.e("v_lshl_add_u32 v%d, v22, 2, v%d" % (vY2, vY2))
        A.e("v_add_u32 v%d, 0x200000, v%d" % (vY2, vY2))

def q_loads(A):
    A.e("s_mul_i32 s44, s2, 9216")
    for i in range(4):
        A.vmem("buffer_load_dwordx2 v[%d:%d], v%d, s[40:43], s44 offen offset:%d" % (vQ + 2 * i, vQ + 2 * i + 1, vR, (i >> 1) * 128 + (i & 1) * 32), ("q",))
    A.vmem("buffer_load_dword v%d, v%d, s[40:43], s44 offen offset:1024" % (vQ + 8, vR2), ("q",))

def gen_kv(g):
    A = g.A
    A.e("s_lshr_b32 s45, s2, 5")
    A.e("s_and_b32 s46, s2, 31")
    A.e("v_and_b32 v2, 63, v0")
    A.e("v_lshrrev_b32 v24, 3, v2")
    A.e("v_and_b32 v25, 7, v0")
    A.e("v_mul_u32_u24 v24, 1152, v24")
    A.e("s_mul_i32 s47, s46, %d" % (64 * 1152))
    A.e("s_lshl_b32 s48, s45, 7")
    A.e("s_add_u32 s47, s47, s48")
    A.e("s_sub_u32 s47, s47, %d" % (8 * 1152))
    A.e("s_mul_i32 s48, s%d, 9216" % sWave)
    A.e("s_add_u32 s47, s47, s48")
    A.e("v_add_u32 v24, s47, v24")
    A.e("v_xor_b32 v26, s%d, v25" % sWave)
    A.e("v_lshl_add_u32 v27, v26, 4, v24")
    A.e("v_xor_b32 v26, 4, v26")
    A.e("v_lshl_add_u32 v28, v26, 4, v24")
    A.e("v_add_u32 v28, %d, v28" % (4 * 9216))
    A.e("v_lshl_add_u32 v29, v25, 4, v24")
    A.e("v_subrev_u32 v29, s48, v29")
    A.e("v_add_u32 v29, %d, v29" % (8 * 9216))
    A.e("s_lshl_b32 s49, s%d, 10" % sWave)
    A.e("s_waitcnt lgkmcnt(0)")
    A.e("v_mov_b32 v7, s12")
    srd(A, 52, 18, SZ_ACT)
    srd(A, 56, 20, SZ_ACT)
    A.e("s_and_b32 s50, s%d, 1" % sWave)
    A.e("s_cmp_eq_u32 s50, 0")
    A.e("s_cselect_b32 s60, s18, s20")
    A.e("s_cselect_b32 s61, s19, s21")
    A.e("s_mov_b32 s62, 0x%x" % SZ_ACT)
    A.e("s_mov_b32 s63, 0x20000")
    A.e("s_mul_i32 s50, s50, 9216")
    A.e("s_add_u32 s50, s50, 8192")
    def stage(lbase, col):
        so = "0" if col == 0 else "s51"
        for arr in range(2):
            for h in range(2):
                A.e("s_add_u32 m0, s49, %d" % (lbase + arr * 9216 + h * 4096))
                A.e("s_nop 0")
                A.e("buffer_load_dwordx4 v%d, s[%d:%d], %s offen lds" % (27 + h, 52 + 4 * arr, 55 + 4 * arr, so))
        A.e("s_add_u32 m0, s50, %d" % lbase)
        A.e("s_nop 0")
        A.e("buffer_load_dwordx4 v29, s[60:63], %s offen lds" % so)
    stage(0, 0)
    L1 = A.newlabel("KV1"); L2 = A.newlabel("KV2")
    A.e("s_movk_i32 s51, 128")
    A.e("s_mov_b32 s47, 1")
    A.e("s_cmp_lt_u32 s2, 224")
    A.e("s_cbranch_scc1 %s" % L1)
    A.e("s_mov_b32 s47, 0")
    stage(18432, 1)
    A.label(L1)
    common_srds(g)
    srd(A, 60, 22, 576 * 8)
    srd(A, 12, 38, 256)
    A.e("v_lshrrev_b32 v26, 3, v0")
    A.e("s_lshl_b32 s48, s45, 7")
    A.e("v_lshl_add_u32 v27, v26, 2, s48")
    A.e("v_lshlrev_b32 v28, 2, v27")
    A.e("buffer_load_dwordx4 v[56:59], v28, s[60:63], 0 offen")
    A.e("buffer_load_dwordx4 v[60:63], v28, s[60:63], 0 offen offset:512")
    A.e("v_lshlrev_b32 v30, 12, v27")
    A.e("s_lshl_b32 s48, s46, 7")
    A.e("v_lshl_add_u32 v31, v25, 4, s48")
    A.e("v_sub_u32 v30, v30, v31")
    A.e("v_add_u32 v30, 4080, v30")
    A.e("v_lshrrev_b32 v28, 2, v26")
    A.e("v_and_b32 v29, 3, v26")
    A.e("v_lshlrev_b32 v29, 2, v29")
    A.e("v_lshl_add_u32 v29, v25, 10, v29")
    A.e("v_xor_b32 v31, v28, v25")
    A.e("v_lshl_add_u32 v24, v31, 4, v29")
    A.e("v_add_u32 v31, 1, v25")
    A.e("v_and_b32 v31, 7, v31")
    A.e("v_xor_b32 v31, v28, v31")
    A.e("v_lshl_add_u32 v25, v31, 4, v29")
    A.e("s_mov_b32 s64, 0x%x" % OFF_U)
    A.e("s_mov_b32 s65, 0x%x" % (OFF_U + 4096))
    A.e("s_mov_b32 s66, 0x%x" % (OFF_U + 8192))
    A.e("s_mov_b32 s67, 0x%x" % (OFF_U + 12288))
    srd(A, 40, 16, SZ_ACT)
    row_addrs(A, "R")
    code_prefetch(A, "mega_kernel", "code_end", 256, 210, 60, back=True)
    A.e("s_waitcnt vmcnt(1)")
    A.e("s_barrier")
    A.e("buffer_load_dword v209, off, s[12:15], 0 sc1")
    g.stamp(1)
    K0, V0, SK = 32, 44, 56
    Lt = A.newlabel("KVT"); Lx = A.newlabel("KVX")
    A.label(Lt)
    for i in range(0, 4, 2):
        A.e("ds_read2_b32 v[%d:%d], v24 offset0:%d offset1:%d" % (K0 + i, K0 + i + 1, (4 + i) * 32, (5 + i) * 32))
    A.e("ds_read_b32 v%d, v24 offset:%d" % (V0 + 1, 9216 + 7 * 128))
    A.e("v_add_u32 v26, 1024, v25")
    A.e("v_add_u32 v27, %d, v25" % (1024 + 9216))
    for i in range(0, 8, 2):
        A.e("ds_read2_b32 v[%d:%d], v26 offset0:%d offset1:%d" % (K0 + 4 + i, K0 + 5 + i, i * 32, (i + 1) * 32))
    for i in range(0, 8, 2):
        A.e("ds_read2_b32 v[%d:%d], v27 offset0:%d offset1:%d" % (V0 + 2 + i, V0 + 3 + i, i * 32, (i + 1) * 32))
    V0 += 1
    for c in range(2):
        for q in range(2):
            A.e("v_lshlrev_b32 v%d, 16, v%d" % (84 + 4 * c + 2 * q, SK + 2 * c + q))
            A.e("v_and_b32 v%d, 0xffff0000, v%d" % (85 + 4 * c + 2 * q, SK + 2 * c + q))
    A.e("s_waitcnt lgkmcnt(4)")
    for i in range(12):
        A.e("v_lshlrev_b32 v%d, 16, v%d" % (92 + i, K0 + i))
        A.e("v_and_b32 v%d, 0xffff0000, v%d" % (K0 + i, K0 + i))
    kb = [92, K0]
    for c in range(2):
        for i in range(9):
            d = 104 + 9 * c + i
            A.e("v_mul_f32 v%d, v%d, v%d" % (d, kb[c] + i, 87 + 4 * c))
            A.e("v_fmac_f32 v%d, v%d, v%d" % (d, kb[c] + i + 1, 86 + 4 * c))
            A.e("v_fmac_f32 v%d, v%d, v%d" % (d, kb[c] + i + 2, 85 + 4 * c))
            A.e("v_fmac_f32 v%d, v%d, v%d" % (d, kb[c] + i + 3, 84 + 4 * c))
    A.e("s_waitcnt lgkmcnt(0)")
    for i in range(9):
        A.e("v_lshlrev_b32 v92, 16, v%d" % (V0 + i))
        A.e("v_and_b32 v93, 0xffff0000, v%d" % (V0 + i))
        A.e("v_mul_f32 v%d, v%d, v92" % (104 + i, 104 + i))
        A.e("v_mul_f32 v%d, v%d, v93" % (113 + i, 113 + i))
    for c in range(2):
        for ver in range(2):
            q = 124 + 4 * (2 * c + ver)
            for p in range(4):
                hi = 104 + 9 * c + 8 - ver - 2 * p
                A.e("v_cvt_pk_bf16_f32 v%d, v%d, v%d" % (q + p, hi, hi - 1))
            A.e("buffer_store_dwordx4 v[%d:%d], v30, s[8:11], s%d offen sc1" % (q, q + 3, 64 + 2 * c + ver))
    A.e("s_cmp_lg_u32 s47, 0")
    A.e("s_cbranch_scc1 %s" % Lx)
    A.e("s_mov_b32 s47, 1")
    for i in range(4):
        A.e("v_mov_b32 v%d, v%d" % (SK + i, SK + 4 + i))
    A.e("v_add_u32 v30, 0x80000, v30")
    A.e("v_add_u32 v24, 18432, v24")
    A.e("v_add_u32 v25, 18432, v25")
    A.e("s_branch %s" % Lt)
    A.label(Lx)
    A.e("s_lshl_b32 s50, s2, 2")
    A.e("s_add_u32 s50, s50, s%d" % sWave)
    A.e("s_lshl_b32 s51, s50, 12")
    A.e("v_lshlrev_b32 v5, 4, v2")
    srd(A, 52, 24, SZ_ACT)
    srd(A, 56, 26, 576 * 2)
    for r in range(4):
        A.e("buffer_load_dwordx4 v[%d:%d], v5, s[52:55], s51 offen offset:%d" % (192 + 4 * r, 195 + 4 * r, r * 1024))
    A.e("s_lshl_b32 s51, s50, 1")
    A.e("buffer_load_ushort v208, off, s[56:59], s51")
    q_loads(A)
    A.e("s_waitcnt vmcnt(14)")
    A.e("v_readfirstlane_b32 s%d, v209" % sNonce)
    A.e("s_cmp_lg_u32 s%d, 0" % sNonce)
    A.e("s_cbranch_scc1 %s" % L2)
    get_nonce(g, 32, 47)
    A.label(L2)
    A.e("s_lshl_b32 s51, s2, 7")
    A.e("s_add_u32 s51, s51, 0x%x" % FL_KV)
    g.publish(51, 32, 47, keep=10)
    g.stamp(2)

def gen_conv(g):
    A = g.A
    A.e("v_lshlrev_b32 v3, 2, v2")
    A.e("s_mul_i32 s44, s%d, %d" % (sWave, LSZ))
    A.e("s_mul_i32 s48, s%d, %d" % (sWave, USZ))
    A.e("s_add_u32 s48, s48, %d" % (4 * LSZ))
    A.e("v_lshrrev_b32 v24, 2, v2")
    A.e("v_and_b32 v25, 3, v2")
    A.e("v_mul_u32_u24 v24, 96, v24")
    A.e("v_lshl_add_u32 v24, v25, 4, v24")
    A.e("s_add_u32 s47, s48, %d" % (15 * 96))
    A.e("v_add_u32 v24, s47, v24")
    A.e("v_add_u32 v25, s48, v5")
    A.e("v_and_b32 v26, 15, v2")
    A.e("v_lshrrev_b32 v27, 4, v2")
    A.e("v_lshlrev_b32 v14, 3, v27")
    A.e("v_sub_u32 v14, v14, v26")
    A.e("v_add_u32 v14, 15, v14")
    A.e("v_and_b32 v28, 1, v14")
    A.e("v_mul_u32_u24 v28, %d, v28" % TSZ)
    A.e("v_lshrrev_b32 v14, 1, v14")
    A.e("v_lshl_add_u32 v14, v14, 4, v28")
    A.e("v_add_u32 v14, s44, v14")
    A.e("v_mul_u32_u24 v15, 96, v26")
    A.e("v_lshl_add_u32 v15, v27, 4, v15")
    A.e("v_add_u32 v15, s48, v15")
    for i in range(36, 40):
        A.e("v_mov_b32 v%d, 0" % i)
    A.e("s_lshr_b32 s49, s2, 4")
    A.e("s_min_u32 s49, s49, 7")
    A.e("s_lshl_b32 s49, s49, 12")
    A.e("s_add_u32 s49, s49, 0x%x" % FL_KV)
    A.e("ds_write_b128 v25, v[36:39]")
    A.e("ds_write_b128 v25, v[36:39] offset:416")
    A.e("s_waitcnt vmcnt(7)")
    for r in range(4):
        A.e("ds_write_b128 v24, v[%d:%d] offset:%d" % (192 + 4 * r, 195 + 4 * r, r * 16 * 96))
    A.e("s_lshl_b32 s47, s50, 13")
    A.e("s_add_u32 s47, s47, 0x%x" % OFF_U)
    A.e("s_add_u32 s52, s4, s47")
    A.e("s_addc_u32 s53, s5, 0")
    A.e("s_movk_i32 s54, 4096")
    A.e("s_mov_b32 s55, 0x20000")
    A.e("s_add_u32 s56, s52, 4096")
    A.e("s_addc_u32 s57, s53, 0")
    A.e("s_movk_i32 s58, 4096")
    A.e("s_mov_b32 s59, 0x20000")
    g.spin(49, 32, 32, 47)
    g.stamp(3)
    def piece(p):
        for tb in range(2):
            A.e("s_add_u32 m0, s44, %d" % (tb * TSZ + p * 1024))
            if tb == 0:
                A.e("s_movk_i32 s47, %d" % (256 * p))
                if p == 16:
                    A.e("s_mov_b64 exec, 0xfff")
            else:
                A.e("s_nop 0")
            A.vmem("buffer_load_dwordx4 v3, s[%d:%d], s47 offen sc1 lds" % ((52, 55) if tb == 0 else (56, 59)), ("L", p))
        if p == 16:
            A.e("s_mov_b64 exec, -1")
    def need_pieces(d):
        r = set()
        for q in range(4):
            for mt in range(2):
                i0 = 8 * (127 - 2 * (d + 16 * q) - mt)
                r |= {i0 // 64, (i0 + 19) // 64}
        return sorted(r)
    order = []
    for d in range(16):
        for p in need_pieces(d):
            if p not in order:
                order.append(p)
    npre = len(need_pieces(0))
    for p in order[:npre]:
        piece(p)
    rest = order[npre:]
    vA, vB = 14, 15
    vOp = 64; vAcc = 160
    def areg(d, q, mt): return vOp + (d % 2) * 48 + (q * 2 + mt) * 4
    def breg(d, e): return vOp + (d % 2) * 48 + 32 + e * 4
    def reads(d):
        ops = []
        for e in range(4):
            ops.append(lambda d=d, e=e: A.lds("ds_read_b128 v[%d:%d], v%d offset:%d" % (breg(d, e), breg(d, e) + 3, vB, (16 * e - d + 15) * 96), ("B", d, e)))
        for q in range(4):
            for mt in range(2):
                ops.append(lambda d=d, q=q, mt=mt: A.lds("ds_read_b128 v[%d:%d], v%d offset:%d" % (areg(d, q, mt), areg(d, q, mt) + 3, vA, (127 - 2 * (d + 16 * q) - mt) * 128), ("A", d, q, mt)))
        return [ops[0], ops[4], ops[5], ops[1], ops[2], ops[3]] + ops[6:]
    for p in rest[:3]:
        piece(p)
    rest = rest[3:]
    A.wait_lg0()
    A.wait_vm(*[("L", p) for p in need_pieces(0)])
    g.stamp(4)
    for op in reads(0):
        op()
    for d in range(16):
        nxt = reads(d + 1) if d < 15 else []
        first = True; n = 0
        for q in range(4):
            for nt in range(q, 4):
                for mt in range(2):
                    A.wait_lg(("B", d, nt - q), ("A", d, q, mt))
                    ac = v(vAcc + (nt * 2 + mt) * 4, 4)
                    A.e("v_mfma_f32_16x16x32_bf16 %s, %s, %s, %s" % (ac, v(areg(d, q, mt), 4), v(breg(d, nt - q), 4), "0" if (d == 0 and q == 0) else ac))
                    n += 1
                    if nxt and len(A.lg) < 15:
                        if first:
                            for p in need_pieces(d + 1):
                                A.must(("L", p), 2)
                            A.wait_vm(*[("L", p) for p in need_pieces(d + 1)])
                            first = False
                        nxt.pop(0)()
                    if n in (15, 18) and rest:
                        piece(rest.pop(0))
        assert not nxt
    g.stamp(5)
    A.e("v_lshlrev_b32 v17, 8, v26")
    A.e("v_lshl_add_u32 v17, v27, 5, v17")
    A.e("s_add_u32 s47, s44, %d" % (246 * 16))
    A.e("v_sub_u32 v17, s47, v17")
    for nt in range(4):
        for mt in range(2):
            k = nt * 2 + mt
            A.lds("ds_read_b64 v[%d:%d], v17 offset:%d" % (vOp + 2 * k, vOp + 2 * k + 1, ((3 - nt) * 256 + (1 - mt) * 8) * 16), ("K", k))
    A.e("v_lshlrev_b32 v208, 16, v208")
    A.e("v_mul_u32_u24 v18, 264, v26")
    A.e("v_lshl_add_u32 v18, v27, 5, v18")
    A.e("s_lshl_b32 s47, s%d, 1" % sWave)
    A.e("v_add_u32 v18, s47, v18")
    A.wait_lg0()
    A.e("s_barrier")
    for nt in range(4):
        for mt in range(2):
            k = nt * 2 + mt
            ac = vAcc + k * 4; kr = vOp + 2 * k
            A.e("v_and_b32 v20, 0xffff0000, v%d" % (kr + 1))
            A.e("v_lshlrev_b32 v21, 16, v%d" % (kr + 1))
            A.e("v_and_b32 v22, 0xffff0000, v%d" % kr)
            A.e("v_lshlrev_b32 v23, 16, v%d" % kr)
            for r in range(4):
                A.e("v_fmac_f32 v%d, v%d, v208" % (ac + r, 20 + r))
            for h in range(2):
                A.e("v_cvt_pk_bf16_f32 v%d, v%d, v%d" % (ac + 2 * h, ac + 2 * h, ac + 2 * h + 1))
                off = nt * 16 * 264 + mt * 128 + h * 16
                A.e("ds_write_b16 v18, v%d offset:%d" % (ac + 2 * h, off))
                A.e("ds_write_b16_d16_hi v18, v%d offset:%d" % (ac + 2 * h, off + 8))
    A.e("v_lshrrev_b32 v20, 4, v0")
    A.e("v_and_b32 v21, 15, v0")
    A.e("v_mul_u32_u24 v20, 264, v20")
    A.e("v_lshl_add_u32 v20, v21, 4, v20")
    A.e("v_lshlrev_b32 v21, 4, v0")
    A.e("s_lshl_b32 s47, s2, 14")
    A.e("s_add_u32 s47, s47, 0x%x" % OFF_Y)
    A.e("s_waitcnt lgkmcnt(0)")
    A.e("s_barrier")
    for r in range(4):
        A.e("ds_read_b64 v[%d:%d], v20 offset:%d" % (64 + 4 * r, 65 + 4 * r, r * 16 * 264))
        A.e("ds_read_b64 v[%d:%d], v20 offset:%d" % (66 + 4 * r, 67 + 4 * r, r * 16 * 264 + 8))
    for r in range(4):
        A.e("s_waitcnt lgkmcnt(%d)" % (6 - 2 * r))
        A.e("buffer_store_dwordx4 v[%d:%d], v21, s[8:11], s47 offen sc1" % (64 + 4 * r, 67 + 4 * r))
        if r < 3:
            A.e("s_add_u32 s47, s47, 4096")
    A.e("s_lshl_b32 s51, s2, 7")
    A.e("s_add_u32 s51, s51, 0x%x" % FL_Y)
    g.publish(51, 32, 47)

def common_srds(g):
    A = g.A
    srd(A, 8, 4, WS_BYTES)
    L = A.newlabel("NN")
    A.e("s_or_b32 s12, s2, s%d" % sWave)
    A.e("s_cmp_lg_u32 s12, 0")
    A.e("s_cbranch_scc1 %s" % L)
    srd(A, 12, 38, 256)
    A.e("v_or_b32 v7, 1, v7")
    A.e("buffer_store_dword v7, off, s[12:15], 0 sc1")
    A.label(L)

def gen_touch(g):
    A = g.A
    A.e("s_and_b32 s45, s2, 7")
    A.e("s_lshr_b32 s46, s2, 3")
    A.e("s_sub_u32 s46, s46, 18")
    A.e("s_lshl_b32 s46, s46, 8")
    A.e("v_add_u32 v24, s46, v0")
    A.e("s_mov_b32 s47, 7282")
    A.e("s_movk_i32 s48, 9216 - 1152")
    srd(A, 52, 30, D * F * 2)
    srd(A, 56, 32, D * F * 2)
    srd(A, 60, 34, D * F * 2)
    A.e("s_mul_i32 s49, s45, 1152")
    A.e("s_mul_i32 s50, s45, %d" % (576 * 1152))
    for st in range(2):
        if st:
            A.e("v_add_u32 v24, 3584, v24")
            A.e("v_min_u32 v24, 5183, v24")
        A.e("v_mul_u32_u24 v25, s47, v24")
        A.e("v_lshrrev_b32 v25, 16, v25")
        A.e("v_lshlrev_b32 v26, 7, v24")
        A.e("v_mad_u32_u24 v27, v25, s48, v26")
        A.e("buffer_load_dword v200, v27, s[52:55], s49 offen")
        A.e("buffer_load_dword v201, v27, s[56:59], s49 offen")
        A.e("buffer_load_dword v202, v26, s[60:63], s50 offen")

X = 32
T = 52
YR = 72
PR = 84
M, V = 24, 26
def unpack(A, dst, src, n=9):
    for i in range(n):
        A.e("v_lshlrev_b32 v%d, 16, v%d" % (dst + 2 * i, src + i))
        A.e("v_and_b32 v%d, 0xffff0000, v%d" % (dst + 2 * i + 1, src + i))
def pack(A, dst, src, n=9):
    for i in range(n):
        A.e("v_cvt_pk_bf16_f32 v%d, v%d, v%d" % (dst + i, src + 2 * i, src + 2 * i + 1))
def rnd1(A, r):
    A.e("v_cvt_pk_bf16_f32 v%d, v%d, v%d" % (r, r, r))
    A.e("v_lshlrev_b32 v%d, 16, v%d" % (r, r))
def y_loads(A):
    A.e("s_lshl_b32 s48, s2, 6")
    A.e("s_add_u32 s48, s48, 0x%x" % OFF_Y)
    for i in range(4):
        if i:
            A.e("s_add_u32 s49, s48, %d" % ((i >> 1) * 16 * 16384 + (i & 1) * 4 * 16384))
        A.vmem("buffer_load_dwordx2 v[%d:%d], v%d, s[8:11], s%d offen sc1" % (YR + 2 * i, YR + 2 * i + 1, vY, 49 if i else 48), ("y",))
    A.vmem("buffer_load_dword v%d, v%d, s[8:11], s48 offen sc1" % (YR + 8, vY2), ("y",))
def ln_stats(A, rnd):
    A.e("v_pk_add_f32 v[%d:%d], v[%d:%d], v[%d:%d]" % (M, M + 1, X, X + 1, X + 2, X + 3))
    A.e("v_pk_mul_f32 v[%d:%d], v[%d:%d], v[%d:%d]" % (V, V + 1, X, X + 1, X, X + 1))
    for i in range(1, 9):
        if i > 1:
            A.e("v_pk_add_f32 v[%d:%d], v[%d:%d], v[%d:%d]" % (M, M + 1, M, M + 1, X + 2 * i, X + 2 * i + 1))
        A.e("v_pk_fma_f32 v[%d:%d], v[%d:%d], v[%d:%d], v[%d:%d]" % (V, V + 1, X + 2 * i, X + 2 * i + 1, X + 2 * i, X + 2 * i + 1, V, V + 1))
    A.e("v_add_f32 v%d, v%d, v%d" % (M, M, M + 1))
    A.e("v_add_f32 v%d, v%d, v%d" % (M + 1, V, V + 1))
    a_, b_ = M, M + 1
    A.e("s_nop 1")
    for r in (a_, b_):
        A.e("v_add_f32_dpp v%d, v%d, v%d row_ror:8 row_mask:0xf bank_mask:0xf" % (r, r, r))
    for ins in ("v_permlane16_swap_b32", "v_permlane32_swap_b32"):
        A.e("v_mov_b32 v%d, v%d" % (V, a_))
        A.e("v_mov_b32 v%d, v%d" % (V + 1, b_))
        A.e("s_nop 1")
        A.e("%s v%d, v%d" % (ins, a_, V))
        A.e("%s v%d, v%d" % (ins, b_, V + 1))
        A.e("v_pk_add_f32 v[%d:%d], v[%d:%d], v[%d:%d]" % (M, M + 1, M, M + 1, V, V + 1))
    o = rnd * 256
    A.e("ds_write_b64 v28, v[%d:%d] offset:%d" % (M, M + 1, o))
    A.e("s_waitcnt lgkmcnt(0)")
    A.e("s_barrier")
    A.e("ds_read_b128 v[16:19], v29 offset:%d" % o)
    A.e("ds_read_b128 v[20:23], v29 offset:%d" % (o + 16))
    A.e("s_waitcnt lgkmcnt(0)")
    A.e("v_pk_add_f32 v[16:17], v[16:17], v[18:19]")
    A.e("v_pk_add_f32 v[20:21], v[20:21], v[22:23]")
    A.e("v_pk_add_f32 v[16:17], v[16:17], v[20:21]")
    A.e("v_mul_f32 v%d, 0x3ae38e39, v16" % M)
    A.e("v_mul_f32 v%d, 0x3ae38e39, v17" % V)
    A.e("v_fma_f32 v%d, -v%d, v%d, v%d" % (V, M, M, V))
    A.e("v_max_f32 v%d, 0, v%d" % (V, V))
    rnd1(A, M)
    rnd1(A, V)
    A.e("v_add_f32 v%d, 0x3727c5ac, v%d" % (V, V))
    rnd1(A, V)
    A.e("v_sqrt_f32 v%d, v%d" % (V, V))
    A.e("s_nop 0")
    rnd1(A, V)
    A.e("v_rcp_f32 v%d, v%d" % (V, V))
    for i in range(9):
        A.e("v_pk_add_f32 v[%d:%d], v[%d:%d], v[%d:%d] op_sel_hi:[1,0] neg_lo:[0,1] neg_hi:[0,1]" % (T + 2 * i, T + 2 * i + 1, X + 2 * i, X + 2 * i + 1, M, M + 1))
    for i in range(9):
        A.e("v_pk_mul_f32 v[%d:%d], v[%d:%d], v[%d:%d] op_sel_hi:[1,0]" % (T + 2 * i, T + 2 * i + 1, T + 2 * i, T + 2 * i + 1, V, V + 1))

def lds_rows(A, op, base, reg):
    if op == "w":
        A.e("ds_write_b128 v30, v[%d:%d] offset:%d" % (reg, reg + 3, base - L_RED))
        A.e("ds_write_b128 v30, v[%d:%d] offset:%d" % (reg + 4, reg + 7, base - L_RED + 4096))
        A.e("ds_write_b32 v31, v%d offset:%d" % (reg + 8, base - L_RED + 8192))
    else:
        A.e("ds_read_b128 v[%d:%d], v30 offset:%d" % (reg, reg + 3, base - L_RED))
        A.e("ds_read_b128 v[%d:%d], v30 offset:%d" % (reg + 4, reg + 7, base - L_RED + 4096))
        A.e("ds_read_b32 v%d, v31 offset:%d" % (reg + 8, base - L_RED + 8192))
def row_lds_addrs(A):
    A.e("v_and_b32 v29, 7, v0")
    A.e("v_lshlrev_b32 v29, 5, v29")
    A.e("v_add_u32 v29, %d, v29" % L_RED)
    A.e("s_lshl_b32 s48, s%d, 3" % sWave)
    A.e("v_add_u32 v28, s48, v29")
    A.e("s_mov_b32 s48, %d" % L_RED)
    A.e("v_lshl_add_u32 v30, v0, 4, s48")
    A.e("v_lshl_add_u32 v31, v0, 2, s48")

def gen_mega(A, opt, name="mega_kernel"):
    g = G(A, opt)
    kernel_begin(A, name)
    if name != "mega_kernel":
        A.label("mega_kernel")
    Lend, Ltouch, Lrow0, Lln, Lnoy, Lffn, Lfin = [A.newlabel(n) for n in ("END", "TOUCH", "ROW0", "LN", "NOY", "FFN", "FIN")]
    A.e("s_cmp_ge_u32 s2, 256")
    A.e("s_cbranch_scc1 %s" % Lend)
    A.e("s_load_dwordx16 s[16:31], s[0:1], 0")
    A.e("s_load_dwordx8 s[32:39], s[0:1], 64")
    A.e("s_load_dwordx2 s[4:5], s[0:1], 96")
    A.e("s_memrealtime s[12:13]")
    A.e("v_lshrrev_b32 v1, 6, v0")
    A.e("s_mov_b32 s%d, 0" % sLay)
    A.e("v_readfirstlane_b32 s%d, v1" % sWave)
    if g.prof:
        A.e("v_mov_b32 v%d, 0" % VST)
        g.stamp(0)
    gen_kv(g)
    A.e("s_cmp_ge_u32 s2, 144")
    A.e("s_cbranch_scc1 %s" % Ltouch)
    gen_conv(g)
    A.e("s_branch %s" % Lrow0)
    A.label(Ltouch)
    if opt.get("touch", 1):
        gen_touch(g)
    A.label(Lrow0)
    g.stamp(6)
    ffn = FFN(g)
    ffn.setup()
    ffn.prefill()
    npt = 0
    if opt.get("pt", 0) == 1:
        A.e("v_and_b32 v16, 63, v0")
        A.e("v_min_u32 v16, 17, v16")
        A.e("v_lshlrev_b32 v16, 12, v16")
        A.e("s_add_u32 s48, s%d, 0x%x" % (ffn.sHoff, OFF_P - OFF_HX))
        A.e("buffer_load_dword v203, v16, s[8:11], s%d offen" % ffn.sHoff)
        A.e("buffer_load_dword v204, v16, s[8:11], s48 offen")
        npt = 2
    if opt.get("pt", 0) == 2:
        A.e("v_and_b32 v16, 31, v0")
        A.e("v_bfe_u32 v17, v0, 5, 1")
        A.e("v_lshlrev_b32 v16, 7, v16")
        A.e("v_lshl_add_u32 v18, v17, 14, v16")
        A.e("v_lshl_add_u32 v19, v17, 12, v16")
        A.e("s_add_u32 s48, s%d, 32768" % ffn.sHst)
        A.e("s_add_u32 s49, s%d, 8192" % ffn.sPoff)
        A.e("buffer_load_dword v203, v18, s[8:11], s%d offen" % ffn.sHst)
        A.e("buffer_load_dword v203, v18, s[8:11], s48 offen")
        A.e("buffer_load_dword v203, v16, s[8:11], s%d offen" % ffn.sTail)
        A.e("buffer_load_dword v204, v19, s[8:11], s%d offen" % ffn.sPoff)
        A.e("buffer_load_dword v204, v19, s[8:11], s49 offen")
        A.e("buffer_load_dword v204, v16, s[8:11], s%d offen" % ffn.sPtail)
        npt = 6
    row_addrs(A, "TY")
    row_lds_addrs(A)
    A.e("s_waitcnt vmcnt(%d)" % (ffn.NPRE + npt + (7 if opt.get("touch", 1) else 1)))
    unpack(A, X, vQ)
    A.label(Lln)
    ln_stats(A, 0)
    A.e("s_cmp_lg_u32 s%d, 0" % sLay)
    A.e("s_cbranch_scc1 %s" % Lnoy)
    if opt.get("PADS", 8):
        A.e("s_mov_b64 exec, 0")
        A.e("s_branch PAD_8")
        A.label("PAD_END")
        A.e("s_mov_b64 exec, -1")
    A.e("s_mov_b32 s48, 0x%x" % FL_Y)
    g.spin(48, 144, 16, 49, sleep=opt.get("ysleep", 4))
    g.stamp(7)
    y_loads(A)
    A.wait_vm0()
    lds_rows(A, "w", L_Y, YR)
    A.label(Lnoy)
    unpack(A, PR, YR)
    for i in range(9):
        A.e("v_pk_fma_f32 v[%d:%d], v[%d:%d], v[%d:%d], v[%d:%d]" % (X + 2 * i, X + 2 * i + 1, T + 2 * i, T + 2 * i + 1, PR + 2 * i, PR + 2 * i + 1, X + 2 * i, X + 2 * i + 1))
    pack(A, vQ, X)
    lds_rows(A, "w", L_X1, vQ)
    unpack(A, X, vQ)
    ln_stats(A, 1)
    pack(A, YR, T)
    A.e("s_add_u32 s48, s%d, 0x%x" % (ffn.sRowT, OFF_XN))
    A.e("s_add_u32 s49, s48, 8192")
    A.e("buffer_store_dwordx4 v[%d:%d], v%d, s[8:11], s48 offen sc1" % (YR, YR + 3, vT))
    A.e("buffer_store_dwordx4 v[%d:%d], v%d, s[8:11], s49 offen sc1" % (YR + 4, YR + 7, vT))
    A.e("buffer_store_dword v%d, v%d, s[8:11], s48 offen sc1" % (YR + 8, vT2))
    A.e("s_lshl_b32 s51, s2, 7")
    A.e("s_add_u32 s51, s51, s%d" % sLay)
    A.e("s_add_u32 s51, s51, 0x%x" % FL_XN)
    A.e("s_and_b32 s48, s2, 0xe0")
    A.e("s_lshl_b32 s48, s48, 7")
    A.e("s_add_u32 s48, s48, s%d" % sLay)
    A.e("s_add_u32 s48, s48, 0x%x" % FL_XN)
    g.publish(51, 16, 47)
    g.stamp(8)
    g.spin(48, 32, 20, 49)
    g.stamp(9)
    ffn.main()
    g.stamp(13)
    A.e("s_lshl_b32 s51, s2, 7")
    A.e("s_add_u32 s51, s51, s%d" % sLay)
    A.e("s_add_u32 s51, s51, 0x%x" % FL_P)
    g.publish(51, 16, 47)
    Lnp = A.newlabel("NP")
    A.e("s_cmp_lg_u32 s%d, 0" % sLay)
    A.e("s_cbranch_scc1 %s" % Lnp)
    ffn.prefill()
    A.label(Lnp)
    A.e("s_load_dwordx2 s[52:53], s[0:1], %d" % A_OUT)
    row_lds_addrs(A)
    lds_rows(A, "r", L_X1, vQ)
    lds_rows(A, "r", L_Y, YR)
    row_addrs(A, "TR")
    A.e("s_and_b32 s48, s2, 0xe0")
    A.e("s_lshl_b32 s48, s48, 7")
    A.e("s_add_u32 s48, s48, s%d" % sLay)
    A.e("s_add_u32 s48, s48, 0x%x" % FL_P)
    for i in range(18):
        A.e("v_mov_b32 v%d, 0" % (T + i))
    A.e("s_mov_b32 s50, 0x3f80")
    A.e("s_mov_b32 s51, 0x3f800000")
    A.e("s_waitcnt lgkmcnt(0)")
    unpack(A, X, vQ)
    g.spin(48, 32, 20, 49)
    g.stamp(14)
    for p in range(8):
        A.e("s_add_u32 s48, s%d, 0x%x" % (ffn.sRowT, OFF_P + p * SZ_ACT))
        A.e("s_add_u32 s49, s48, 8192")
        A.e("s_add_u32 s47, s%d, 0x%x" % (ffn.sRowTp, OFF_P + p * SZ_ACT))
        b = PR + 12 * p
        A.vmem("buffer_load_dwordx4 v[%d:%d], v%d, s[8:11], s48 offen sc1" % (b, b + 3, vT), ("P", p))
        A.vmem("buffer_load_dwordx4 v[%d:%d], v%d, s[8:11], s49 offen sc1" % (b + 4, b + 7, vT), ("P", p))
        A.vmem("buffer_load_dword v%d, v%d, s[8:11], s47 offen sc1" % (b + 8, vT2p), ("P", p))
    for p in range(8):
        A.wait_vm(("P", p))
        for i in range(9):
            A.e("v_dot2c_f32_bf16 v%d, s50, v%d" % (T + 2 * i, PR + 12 * p + i))
            A.e("v_dot2c_f32_bf16 v%d, s51, v%d" % (T + 2 * i + 1, PR + 12 * p + i))
    A.e("s_nop 2")
    pack(A, PR, T)
    unpack(A, T, PR)
    for i in range(9):
        A.e("v_pk_add_f32 v[%d:%d], v[%d:%d], v[%d:%d]" % (X + 2 * i, X + 2 * i + 1, X + 2 * i, X + 2 * i + 1, T + 2 * i, T + 2 * i + 1))
    pack(A, PR, X)
    A.e("s_cmp_lg_u32 s%d, 0" % sLay)
    A.e("s_cbranch_scc1 %s" % Lfin)
    unpack(A, X, PR)
    A.e("s_mov_b32 s%d, 0x%x" % (sLay, LAY1))
    A.e("s_branch %s" % Lln)
    A.label(Lfin)
    A.e("s_mov_b32 s54, 0x%x" % SZ_ACT)
    A.e("s_mov_b32 s55, 0x20000")
    A.e("s_mul_i32 s48, s2, 9216")
    for i in range(4):
        A.e("buffer_store_dwordx2 v[%d:%d], v%d, s[52:55], s48 offen offset:%d" % (PR + 2 * i, PR + 2 * i + 1, vR, (i >> 1) * 128 + (i & 1) * 32))
    A.e("buffer_store_dword v%d, v%d, s[52:55], s48 offen offset:1024" % (PR + 8, vR2))
    g.stamp_end()
    A.label(Lend)
    A.e("s_endpgm")
    ffn.slow_paths()
    A.raw(".p2align 6")
    A.raw("code_end:")
    A.e("s_endpgm")
    return descriptor(name, 512, 256)

def ffn_plan(KA, SG, SE):
    blocks = []; bi = {}
    def blk(d):
        if d not in bi:
            bi[d] = len(blocks); blocks.append(d)
        return bi[d]
    st = []
    def g1(u, m, ks):
        if u < 8:
            st.append(("g1", u, m, ks, blk(("Gq", m, ks, u // 4)), u % 4))
        else:
            st.append(("g1", u, m, ks, blk(("Gt", ks // 2)), 4 + 2 * (ks & 1) + m))
    def g2(i, kk):
        if i < 8:
            st.append(("g2", i, 0, kk, blk(("Dq", kk, i // 4)), i % 4))
        else:
            st.append(("g2", i, 0, kk, blk(("Dt", kk // 4)), 4 + kk % 4))
    for ks in range(18):
        for u in range(4):
            for m in range(2): g1(u, m, ks)
    for u in range(4, 8):
        for ks in range(SG):
            for m in range(2): g1(u, m, ks)
    for ks in range(SG, 18 - SE):
        for u in range(4, 8):
            for m in range(2): g1(u, m, ks)
    for u in range(4, 8):
        for ks in range(18 - SE, 18):
            for m in range(2): g1(u, m, ks)
    for ks in range(18):
        for m in range(2): g1(8, m, ks)
    for kk in range(KA):
        for i in range(9): g2(i, kk)
    for i in range(9):
        for kk in range(KA, 18): g2(i, kk)
    return st, blocks

class FFN:
    sXoff, sHoff, sM0b, sT, sT2, sT3, sPoff, sFoff, sJq, sHst, sCnt, sTail, sRowT, sFw = range(16, 30)
    sGq, sGt, sDq, sDt, sDt2, sRowTp, sPoll, sPtail = range(36, 44)
    rG, rU, rD, rT = 72, 76, 80, 84
    vL16, vL8, vGq, vGt, vDq, vDt = 1, 2, 3, 4, 5, 220
    vRq = 6
    vPoll = 216
    vWB, vAcc, vK, vU, vXo = 16, 40, 168, 184, 224
    def __init__(self, g):
        self.g = g; self.A = g.A; self.opt = g.opt; self.slow = []
        self.NPRE = g.opt.get("NPRE", 16)
        self.KA = g.opt.get("KA", 9)
        self.steps, self.blocks = ffn_plan(self.KA, g.opt.get("SG", 6), g.opt.get("SE", 4))
    def setup(self):
        A = self.A; f = self
        srd(A, f.rG, 30, D * F * 2)
        srd(A, f.rU, 32, D * F * 2)
        srd(A, f.rD, 34, D * F * 2)
        A.e("s_and_b32 s44, s%d, 1" % sWave)
        A.e("s_cmp_eq_u32 s44, 0")
        A.e("s_cselect_b32 s%d, s30, s32" % f.rT)
        A.e("s_cselect_b32 s%d, s31, s33" % (f.rT + 1))
        A.e("s_mov_b32 s%d, 0x%x" % (f.rT + 2, D * F * 2))
        A.e("s_mov_b32 s%d, 0x20000" % (f.rT + 3))
        A.e("v_and_b32 v16, 63, v0")
        A.e("v_lshlrev_b32 v%d, 4, v16" % f.vL16)
        A.e("v_lshlrev_b32 v%d, 3, v16" % f.vL8)
        A.e("v_lshrrev_b32 v17, 3, v16")
        A.e("v_lshrrev_b32 v18, 4, v16")
        A.e("v_lshlrev_b32 v19, 1, v18")
        A.e("v_and_b32 v20, 7, v16")
        A.e("v_xor_b32 v19, v19, v20")
        A.e("v_lshlrev_b32 v19, 4, v19")
        A.e("s_movk_i32 s44, 9216")
        A.e("s_movk_i32 s45, 1152")
        A.e("v_mad_u32_u24 v%d, v17, s44, v19" % f.vGq)
        A.e("v_mad_u32_u24 v%d, v17, s45, v19" % f.vDq)
        A.e("v_lshrrev_b32 v17, 1, v16")
        A.e("v_and_b32 v19, 1, v16")
        A.e("v_lshlrev_b32 v19, 4, v19")
        A.e("v_mad_u32_u24 v%d, v17, s44, v19" % f.vGt)
        A.e("v_mad_u32_u24 v%d, v17, s45, v19" % f.vDt)
        A.e("v_lshrrev_b32 v17, 2, v16")
        A.e("v_and_b32 v19, 3, v16")
        A.e("v_lshlrev_b32 v19, 3, v19")
        A.e("v_bfe_u32 v20, v16, 3, 2")
        A.e("v_lshl_add_u32 v21, v17, 7, v19")
        for t_ in range(4):
            A.e("v_xor_b32 v22, %d, v20" % t_)
            A.e("v_lshl_add_u32 v%d, v22, 5, v21" % (f.vRq + t_))
        A.e("v_lshl_add_u32 v%d, v17, 5, v19" % (f.vRq + 4))
        for t_ in range(5):
            A.e("v_add_u32 v%d, 0x10000, v%d" % (f.vRq + 5 + t_, f.vRq + t_))
        A.e("s_and_b32 s46, s2, 7")
        A.e("s_lshr_b32 s47, s2, 3")
        A.e("s_and_b32 s%d, s47, 3" % f.sJq)
        A.e("s_mul_i32 s%d, s47, 73728" % f.sRowT)
        A.e("s_bfe_u32 s44, s2, 0x20001")
        A.e("s_lshl_b32 s44, s44, 10")
        A.e("s_add_u32 s%d, s%d, s44" % (f.sRowT, f.sRowT))
        A.e("s_and_b32 s44, s2, 1")
        A.e("s_lshl_b32 s44, s44, 6")
        A.e("s_add_u32 s%d, s%d, s44" % (f.sRowTp, f.sRowT))
        A.e("s_add_u32 s%d, s%d, s44" % (f.sRowT, f.sRowTp))
        A.e("s_lshr_b32 s47, s47, 2")
        A.e("s_lshl_b32 s%d, s%d, 10" % (f.sM0b, sWave))
        A.e("s_mul_i32 s48, s46, 1152")
        A.e("s_lshl_b32 s49, s%d, 8" % f.sJq)
        A.e("s_lshl_b32 s50, s%d, 5" % f.sJq)
        A.e("s_add_u32 s50, s50, 1024")
        A.e("s_mul_i32 s44, s%d, %d" % (sWave, 8 * 9216))
        A.e("s_add_u32 s44, s44, s48")
        A.e("s_add_u32 s%d, s44, s49" % f.sGq)
        A.e("s_lshr_b32 s44, s%d, 1" % sWave)
        A.e("s_mul_i32 s44, s44, %d" % (32 * 9216))
        A.e("s_add_u32 s44, s44, s48")
        A.e("s_add_u32 s%d, s44, s50" % f.sGt)
        A.e("s_mul_i32 s48, s46, %d" % (576 * 1152))
        A.e("s_mul_i32 s44, s%d, %d" % (sWave, 8 * 1152))
        A.e("s_add_u32 s44, s44, s48")
        A.e("s_add_u32 s%d, s44, s49" % f.sDq)
        A.e("s_add_u32 s48, s48, s50")
        A.e("s_mul_i32 s44, s%d, %d" % (sWave, 128 * 1152))
        A.e("s_add_u32 s%d, s44, s48" % f.sDt)
        A.e("s_mul_i32 s44, s%d, %d" % (sWave, 32 * 1152))
        A.e("s_add_u32 s44, s44, %d" % (512 * 1152))
        A.e("s_add_u32 s%d, s44, s48" % f.sDt2)
        A.e("s_lshl_b32 s45, s47, 2")
        A.e("s_add_u32 s45, s45, s%d" % sWave)
        A.e("s_mul_i32 s45, s45, 73728")
        A.e("s_add_u32 s%d, s45, 0x%x" % (f.sXoff, OFF_XN))
        A.e("s_mul_i32 s44, s46, %d" % SZ_ACT)
        A.e("s_add_u32 s45, s45, s44")
        A.e("s_add_u32 s%d, s45, 0x%x" % (f.sHoff, OFF_HX))
        A.e("s_lshl_b32 s44, s%d, 12" % f.sJq)
        A.e("s_add_u32 s%d, s%d, s44" % (f.sHst, f.sHoff))
        A.e("s_lshl_b32 s44, s%d, 14" % f.sJq)
        A.e("s_add_u32 s%d, s45, s44" % f.sPoff)
        A.e("s_add_u32 s%d, s%d, 0x%x" % (f.sPoff, f.sPoff, OFF_P))
        A.e("s_lshr_b32 s44, s%d, 1" % f.sJq)
        A.e("s_lshl_b32 s44, s44, 12")
        A.e("s_and_b32 s45, s%d, 1" % f.sJq)
        A.e("s_lshl_b32 s45, s45, 9")
        A.e("s_add_u32 s44, s44, s45")
        A.e("s_add_u32 s44, s44, 65536")
        A.e("s_add_u32 s%d, s44, s%d" % (f.sTail, f.sHoff))
        A.e("s_add_u32 s%d, s%d, 0x%x" % (f.sPtail, f.sTail, OFF_P - OFF_HX))
        A.e("s_lshl_b32 s47, s47, 3")
        A.e("s_add_u32 s47, s47, s46")
        A.e("s_lshl_b32 s47, s47, 9")
        A.e("s_add_u32 s%d, s47, 0x%x" % (f.sFoff, FL_H))
        A.e("v_and_b32 v222, 3, v0")
        A.e("v_lshlrev_b32 v222, 7, v222")
    def dma(self, b):
        A = self.A; f = self; d = f.blocks[b]
        if d[0] == "Gq":
            vo, r, sb, off = f.vGq, (f.rG, f.rU)[d[1]], f.sGq, d[2] * 32 * 9216 + d[3] * 128
        elif d[0] == "Gt":
            vo, r, sb, off = f.vGt, f.rT, f.sGt, d[1] * 64 * 9216
        elif d[0] == "Dq":
            kk = d[1]; base = 128 * (kk % 4) + 32 * (kk // 4) if kk < 16 else 512 + 32 * (kk - 16)
            vo, r, sb, off = f.vDq, f.rD, f.sDq, base * 1152 + d[2] * 128
        else:
            vo, r, sb, off = f.vDt, f.rD, (f.sDt if d[1] < 4 else f.sDt2), (d[1] * 32 * 1152 if d[1] < 4 else 0)
        A.e("s_add_u32 m0, s%d, %d" % (f.sM0b, (b % NR) * 4096))
        A.e("s_add_u32 s%d, s%d, %d" % (f.sT, sb, off))
        A.vmem("buffer_load_dwordx4 v%d, s[%d:%d], s%d offen lds" % (vo, r, r + 3, f.sT), ("W", b))
    def prefill(self):
        for b in range(self.NPRE):
            self.dma(b)
    def main(self):
        A = self.A; f = self; opt = self.opt; g = self.g; KA = f.KA
        PD = opt.get("PD", 5); NB = PD + 1
        vAcc, vU, vK, vXo, vWB, vL16, vL8, vPoll = f.vAcc, f.vU, f.vK, f.vXo, f.vWB, f.vL16, f.vL8, f.vPoll
        A.vm = []; A.lg = []; A.issued = {}
        for b in range(f.NPRE):
            A.issued[("W", b)] = 1
        A.e("s_add_u32 s%d, s%d, s%d" % (f.sPoll, f.sFoff, sLay))
        A.e("s_lshl_b32 s%d, s%d, 7" % (f.sFw, f.sJq))
        A.e("s_add_u32 s%d, s%d, s%d" % (f.sFw, f.sFw, f.sPoll))
        A.e("s_lshl_b32 s%d, s%d, 28" % (f.sCnt, sWave))
        A.e("s_add_u32 s%d, s%d, s%d" % (f.sFw, f.sFw, f.sCnt))
        A.e("v_mov_b32 v221, s%d" % sNonce)
        def opreg(ks, tt, half=None):
            i = ks * 4 + tt
            if i < 64:
                return a(i * 4, 4)
            b = vXo + (i - 64) * 4
            return v(b, 4) if half is None else v(b + 2 * half, 2)
        S = [vAcc, vAcc + 32, vAcc + 64, vAcc + 96]
        slot = {0: S[0], 1: S[1], 2: S[2], 3: S[3], 4: vU, 5: S[0], 6: S[1], 7: S[2], 8: S[3]}
        acc1 = lambda u, m, tt: slot[u] + m * 16 + tt * 4
        t2 = [vAcc + 16 * i for i in range(6)] + [vK, vU, vU + 16]
        acc2 = lambda i, tt: t2[i] + tt * 4
        quad1 = lambda u, tt: (vK + tt * 4) if u < 2 else (acc1(3, 1, tt) if u < 4 else acc1(u & ~1, 1, tt))
        steps = f.steps; NS = len(steps); NBK = len(f.blocks)
        fu = {}; lu = {}
        for i, s_ in enumerate(steps):
            fu.setdefault(s_[4], i); lu[s_[4]] = i
        BS = opt.get("BS", 12)
        bars = sorted(set(range(0, NS, BS)) | set(opt.get("xbars", [])))
        pubs = opt.get("pubs", (264, 336, 360))
        assert all(p in bars for p in pubs)
        def ld_ops(kind, ks):
            ops = []
            base = f.sXoff if kind == "X" else f.sHoff
            for tt in range(4):
                if kind == "X" or ks < 16:
                    def fn(ks=ks, tt=tt):
                        if tt == 0:
                            A.e("s_add_u32 s%d, s%d, %d" % (f.sT2, base, ks * 4096))
                        A.vmem("buffer_load_dwordx4 %s, v%d, s[8:11], s%d offen offset:%d sc1" % (opreg(ks, tt), vL16, f.sT2, tt * 1024), (kind, ks, tt))
                    ops.append(fn)
                else:
                    for hf in range(2):
                        def fn(ks=ks, tt=tt, hf=hf):
                            if tt == 0 and hf == 0:
                                A.e("s_add_u32 s%d, s%d, %d" % (f.sT2, base, ks * 4096))
                            A.vmem("buffer_load_dwordx2 %s, v%d, s[8:11], s%d offen offset:%d sc1" % (opreg(ks, tt, hf), vL8, f.sT2, tt * 1024 + hf * 512), (kind, ks, tt))
                        ops.append(fn)
            return ops
        def epi1_ops(u):
            ops = []
            for tt in range(4):
                gg = acc1(u, 0, tt); up = acc1(u, 1, tt); qq = quad1(u, tt); q = qq + 2 * (u & 1)
                for r in range(4):
                    ops.append(lambda gg=gg, r=r: A.e("v_max_f32 v%d, 0, v%d" % (gg + r, gg + r)))
                for r in range(4):
                    ops.append(lambda gg=gg, up=up, r=r: A.e("v_mul_f32 v%d, v%d, v%d" % (gg + r, gg + r, up + r)))
                for p in range(2):
                    def cv(gg=gg, q=q, p=p, u=u):
                        A.e("v_cvt_pk_bf16_f32 v%d, v%d, v%d" % (q + p, gg + 2 * p, gg + 2 * p + 1))
                    ops.append(cv)
                if u in (1, 2, 5, 7):
                    def st(u=u | 1, tt=tt, qq=qq):
                        if tt == 0:
                            A.e("s_add_u32 s%d, s%d, %d" % (f.sT3, f.sHst, (u // 2) * 16384))
                        A.vmem("buffer_store_dwordx4 v[%d:%d], v%d, s[8:11], s%d offen offset:%d %s" % (qq, qq + 3, vL16, f.sT3, tt * 1024, opt.get("hfl", "sc1")), ("S", u))
                    ops.append(st)
                elif u == 8:
                    def st(tt=tt, qq=qq):
                        A.vmem("buffer_store_dwordx2 v[%d:%d], v%d, s[8:11], s%d offen offset:%d %s" % (qq, qq + 1, vL8, f.sTail, tt * 1024, opt.get("hfl", "sc1")), ("S", 8))
                    ops.append(st)
            return ops
        def epi2_ops(i):
            ops = []; ie = i & ~1
            for tt in range(4):
                ac = acc2(i, tt); q = acc2(ie, tt) + 2 * (i & 1)
                for p in range(2):
                    ops.append(lambda ac=ac, q=q, p=p: A.e("v_cvt_pk_bf16_f32 v%d, v%d, v%d" % (q + p, ac + 2 * p, ac + 2 * p + 1)))
                if i & 1:
                    def st(i=i, tt=tt, ie=ie):
                        if tt == 0:
                            A.e("s_add_u32 s%d, s%d, %d" % (f.sT3, f.sPoff, (i // 2) * 4096))
                        qq = acc2(ie, tt)
                        A.vmem("buffer_store_dwordx4 v[%d:%d], v%d, s[8:11], s%d offen offset:%d sc1" % (qq, qq + 3, vL16, f.sT3, tt * 1024), ("P", i))
                    ops.append(st)
                elif i == 8:
                    def st(tt=tt):
                        qq = acc2(8, tt)
                        A.vmem("buffer_store_dwordx2 v[%d:%d], v%d, s[8:11], s%d offen offset:%d sc1" % (qq, qq + 1, vL8, f.sPtail, tt * 1024), ("P", 8))
                    ops.append(st)
            return ops
        def flag_store(val):
            A.vmem("buffer_store_dword v221, off, s[8:11], s%d sc1" % f.sFw, ("F", val))
            A.e("s_add_u32 s%d, s%d, 0x10000" % (f.sFw, f.sFw))
        def poll_issue(val):
            if val > 1:
                A.e("s_add_u32 s%d, s%d, 0x10000" % (f.sPoll, f.sPoll))
            A.vmem("buffer_load_dword v%d, v222, s[8:11], s%d offen sc1" % (vPoll, f.sPoll), ("Q", val))
        def check():
            A.e("v_cmp_ne_u32 vcc, s%d, v%d" % (sNonce, vPoll))
        f.check = check
        def poll_check(val):
            A.wait_vm(("Q", val))
            Lok = A.newlabel("PK"); Lsl = A.newlabel("PS")
            check()
            A.e("s_cbranch_vccnz %s" % Lsl)
            A.label(Lok)
            f.slow.append((Lsl, Lok, val))
        GAP = opt.get("GAP", 5); PRO = opt.get("PRO", 12); TG = opt.get("TGAP", 20)
        P1i, P1c = opt.get("P1", (278, 288)); P2i, P2c = opt.get("P2", (346, 356)); P3i, P3c = opt.get("P3", (374, 384))
        Q = {"W": [], "X": [], "S": []}
        wbar = {}
        for b in range(NBK):
            wbar[b] = max(p for p in bars if p <= fu[b])
            if b >= f.NPRE:
                e = -1 if b < NR else min(p for p in bars if p - PD >= lu[b - NR]) - PD + 0.3
                assert e < wbar[b] - PD - 10, (b, e, wbar[b])
                Q["W"].append([e, wbar[b] - PD - opt.get("WEARLY", 10), lambda b=b: f.dma(b)])
        x1 = {}
        for i, s_ in enumerate(steps):
            x1.setdefault((s_[0], s_[3]), i)
        lastx = {s_[3]: i for i, s_ in enumerate(steps) if s_[0] == "g1"}
        for ks in range(18):
            Q["X"] += [[-1, x1[("g1", ks)], op] for op in ld_ops("X", ks)]
        for kk in range(18):
            e = max(lastx[kk] + 1, P1c) if kk < 8 else (P2c if kk < 16 else P3c)
            assert e > lastx[kk] and e >= P1c
            Q["X"] += [[e, x1[("g2", kk)] - opt.get("HEARLY", 10), op] for op in ld_ops("H", kk)]
        ev = {}
        for i, fn in ((P1i, lambda: poll_issue(1)), (P1c, lambda: poll_check(1)), (P2i, lambda: poll_issue(2)), (P2c, lambda: poll_check(2)),
                      (P3i, lambda: poll_issue(3)), (P3c, lambda: poll_check(3))):
            ev.setdefault(i, []).append(fn)
        pub = {pubs[0]: (1, [("S", 1), ("S", 3)]), pubs[1]: (2, [("S", 5), ("S", 7)]), pubs[2]: (3, [("S", 8)])}
        eq = []
        def pick(now):
            best = None
            for k, q in Q.items():
                if q and q[0][0] <= now and (best is None or q[0][1] < Q[best][0][1]):
                    best = k
            return best
        A.skip = opt.get("skip", "")
        for _ in range(PRO):
            Q[pick(-1)].pop(0)[2]()
        def read(i, h):
            b, sub = steps[i][4], steps[i][5]
            off = (b % NR) * 4096
            st_ = off >> 16; off &= 0xffff
            if sub < 4:
                vr = f.vRq + 5 * st_ + sub; off += h * 2048
            else:
                vr = f.vRq + 5 * st_ + 4; off += (sub - 4) * 1024 + h * 512
            r = vWB + (i % NB) * 4 + 2 * h
            A.lds("ds_read_b64_tr_b16 v[%d:%d], v%d offset:%d" % (r, r + 1, vr, off), ("R", i))
        def issue_read(i, h):
            if i >= NS: return
            if h == 0 and i in bars:
                tags = [("W", b) for b in range(NBK) if wbar[b] == i]
                for tg in tags:
                    while A.issued.get(tg, 0) < 1:
                        print("late W", tg, "at step", i)
                        Q["W"].pop(0)[2]()
                if i in pub:
                    for tg in pub[i][1]:
                        A.must(tg, 4)
                    tags += pub[i][1]
                need_free = any(q[0] == i - PD + 0.3 for q in Q["W"])
                if tags or need_free:
                    A.wait_vm(*tags)
                    A.e("s_barrier")
                if i in pub:
                    flag_store(pub[i][0])
            read(i, h)
        for i in range(PD):
            issue_read(i, 0); issue_read(i, 1)
        last = -100
        marks = (144, 324, 324 + 9 * KA)
        A.skip = opt.get("skip", "")
        log = []
        nexts = [-100]
        pads = list(range(8, NS, opt.get("PADS", 8))) if opt.get("PADS", 8) else []
        f.pad0 = "PAD_%d" % pads[0] if pads else None
        for i, (kind, u, m, ks, _b, _s) in enumerate(steps):
            if i in pads:
                A.label("PAD_%d" % i)
                A.e("s_cbranch_execz %s" % ("PAD_%d" % pads[pads.index(i) + 1] if i != pads[-1] else "PAD_END"))
            if i in marks:
                g.stamp(10 + marks.index(i))
            if i in opt.get("fine", []):
                g.stamp(16 + opt["fine"].index(i))
            for fn in ev.get(i, []):
                fn()
            wb = v(vWB + (i % NB) * 4, 4)
            if ks == 0:
                pe = set(e[2] for e in eq); ps = set(e[3] for e in Q["S"])
                if kind == "g1":
                    assert not (pe & set(("S", o) for o in range(u) if slot[o] == slot[u])), (i, pe)
                    assert u != 8 or A.issued.get(("S", 3), 0) == 4
                else:
                    assert not ((pe | ps) & set(("S", o) for o in range(8))), (i, pe, ps)
            A.wait_lg(("R", i))
            for tt in range(4):
                tg = ("X" if kind == "g1" else "H", ks, tt)
                while A.issued.get(tg, 0) < (2 if (kind == "g2" and ks >= 16) else 1):
                    assert Q["X"][0][0] <= i
                    print("late", tg, "at step", i)
                    Q["X"].pop(0)[2]()
                A.wait_vm(tg)
                ac = v(acc1(u, m, tt) if kind == "g1" else acc2(u, tt), 4)
                A.e("v_mfma_f32_16x16x32_bf16 %s, %s, %s, %s" % (ac, wb, opreg(ks, tt), "0" if ks == 0 else ac))
                now = i + tt / 4.0; slotn = 4 * i + tt; did = 0
                if tt in (0, 2):
                    issue_read(i + PD, tt // 2); did = 1
                elif tt == 3:
                    did = 1 if opt.get("w3", 1) else 0
                if slotn - last >= GAP and len(A.vm) < 60:
                    k = pick(now)
                    if k is not None:
                        ent = Q[k].pop(0); ent[2]()
                        log.append((now, k, ent[1]))
                        ln = A.lines[-1]
                        last = slotn - (2 if "dwordx2" in ln else 0) + ((TG - GAP) if (" lds" in ln and ("v%d," % f.vGt in ln or "v%d," % f.vDt in ln)) else 0)
                        did += 1
                for _ in range(2 - did):
                    if eq and eq[0][0] <= i:
                        e = eq.pop(0)
                        if e[3]:
                            sg = opt.get("SGAPS", (9, 4, 2, 4))[0 if i < 240 else (1 if i < 324 else (2 if i < 390 else 3))]
                            nexts[0] = max(now, nexts[0] + sg)
                            Q["S"].append([nexts[0], now - 100, e[1], e[2]])
                        else:
                            e[1]()
            if kind == "g1" and ks == 17 and m == 1 and u != 2:
                for uu in ((3, 2) if u == 3 else (u,)):
                    eq += [(i + 3, op, ("S", uu), op.__name__ == "st") for op in epi1_ops(uu)]
            if kind == "g2" and ks == 17:
                eq += [(i + 3, op, ("P", u), op.__name__ == "st") for op in epi2_ops(u)]
        assert not Q["W"] and not Q["X"]
        if opt.get("log"):
            print(" ".join("%g%s%g" % l for l in log))
        for e in Q["S"]:
            e[2]()
        A.e("s_nop 7")
        for e in eq:
            e[1]()
        A.skip = ""
    def slow_paths(self):
        A = self.A; f = self
        for Lsl, Lok, val in f.slow:
            A.label(Lsl)
            A.e("s_mov_b32 s%d, 0x20000" % f.sCnt)
            Lp = A.newlabel("PL")
            A.label(Lp)
            A.e("buffer_load_dword v%d, v222, s[8:11], s%d offen sc1" % (f.vPoll, f.sPoll))
            A.e("s_sub_u32 s%d, s%d, 1" % (f.sCnt, f.sCnt))
            A.e("s_waitcnt vmcnt(0)")
            f.check()
            A.e("s_cmp_eq_u32 s%d, 0" % f.sCnt)
            A.e("s_cbranch_scc1 %s" % Lok)
            A.e("s_cbranch_vccnz %s" % Lp)
            A.e("s_branch %s" % Lok)
```
